```python
import torch

def _softmax(x, axis=-1):
    return torch.softmax(x, dim=axis)

def _gelu(x):
    return torch.nn.functional.gelu(x, approximate='tanh')

def _silu(x):
    return torch.nn.functional.silu(x)

def _sigmoid(x):
    return torch.sigmoid(x)

def _layernorm(x, axis=-1, eps=1e-05):
    m = x.mean(dim=axis, keepdim=True)
    v = x.var(dim=axis, keepdim=True, unbiased=False)
    return (x - m) / torch.sqrt(v + eps)

def _scatter_add(tgt, idx, src, axis=0):
    return tgt.clone().index_add_(axis, idx, src)

def _segment_sum(src, seg, n):
    out = torch.zeros((n,) + src.shape[1:], dtype=src.dtype)
    return out.index_add_(0, seg, src)

def _pad(x, pw):
    flat = tuple((v for pair in reversed(pw) for v in pair))
    return torch.nn.functional.pad(x, flat)
kernel_name = 'adaLN_cond__gqa_block_cached__glu_gated_reglu__prompt'

def setup_inputs():

    _w = lambda a: (lambda t: t.to(torch.bfloat16) if t.is_floating_point() else t)(torch.as_tensor(a))

    def _A_setup():
        B, Sq, D = (1, 2048, 640)
        Hq, Hkv, Sk, Dh = (32, 32, 2048, 128)
        assert Hq % Hkv == 0, (Hq, Hkv)
        return {'x': _w((lambda *s: torch.randn(*s, dtype=torch.bfloat16) * 0.05)(B, Sq, D)), 'k_cache': _w((lambda *s: torch.randn(*s, dtype=torch.bfloat16) * 1.6)(B, Hkv, Sk, Dh)), 'v_cache': _w((lambda *s: torch.randn(*s, dtype=torch.bfloat16) * 0.8)(B, Hkv, Sk, Dh)), 'wq': _w((lambda *s: torch.randn(*s, dtype=torch.bfloat16) * 1.6)(D, Hq * Dh) * D ** (-0.5)), 'wo': _w((lambda *s: torch.randn(*s, dtype=torch.bfloat16) * 0.8)(Hq * Dh, D) * (Hq * Dh) ** (-0.5))}
    _A_in = _A_setup()

    def _B_setup():
        B, S, D, F = (1, 2048, 640, 1728)
        return {'x': _w((lambda *s: torch.randn(*s, dtype=torch.bfloat16) * 0.05)(B, S, D)), 'W_gate': _w((lambda *s: torch.randn(*s, dtype=torch.bfloat16) * 0.4)(D, F) * (2.0 / D) ** 0.5), 'W_up': _w((lambda *s: torch.randn(*s, dtype=torch.bfloat16) * 0.4)(D, F) * (2.0 / D) ** 0.5), 'W_down': _w((lambda *s: torch.randn(*s, dtype=torch.bfloat16) * 0.4)(F, D) * (1.0 / F) ** 0.5)}
    _B_in = _B_setup()
    return {'A_x': _A_in['x'], 'A_k_cache': _A_in['k_cache'], 'A_v_cache': _A_in['v_cache'], 'A_wq': _A_in['wq'], 'A_wo': _A_in['wo'], 'B_x': _B_in['x'], 'B_W_gate': _B_in['W_gate'], 'B_W_up': _B_in['W_up'], 'B_W_down': _B_in['W_down'], 'c': _w((lambda *s: torch.randn(*s, dtype=torch.bfloat16) * 0.2)(1, 640) * 8.0), 'w_mod': _w((lambda *s: torch.randn(*s, dtype=torch.bfloat16) * 0.2)(640, 6 * 640) * 640 ** (-0.5) * 8.0)}

def reference(A_x, A_k_cache, A_v_cache, A_wq, A_wo, B_x, B_W_gate, B_W_up, B_W_down, c, w_mod):

    def _A_ref(x, k_cache, v_cache, wq, wo):
        B, Sq, D = x.shape
        Hq, Dh = (32, 128)
        Hkv = k_cache.shape[1]
        rep = Hq // Hkv
        q = (lambda x, *d: x.permute(*d))((x @ wq).reshape(B, Sq, Hq, Dh), 0, 2, 1, 3)
        k = (lambda x, n, axis: torch.repeat_interleave(x, n, dim=axis))(k_cache, rep, axis=1)
        v = (lambda x, n, axis: torch.repeat_interleave(x, n, dim=axis))(v_cache, rep, axis=1)
        scores = torch.einsum('bhqd,bhkd->bhqk', q, k) * Dh ** (-0.5)
        p = _softmax(scores, axis=-1)
        o = torch.einsum('bhqk,bhkd->bhqd', p, v)
        return (lambda x, *d: x.permute(*d))(o, 0, 2, 1, 3).reshape(B, Sq, Hq * Dh) @ wo

    def _B_ref(x, W_gate, W_up, W_down):
        gate = torch.einsum('bsd,df->bsf', x, W_gate)
        up = torch.einsum('bsd,df->bsf', x, W_up)
        gate = gate * (lambda x, dt: x.to(dt))(gate > 0, gate.dtype)
        h = gate * up
        return torch.einsum('bsf,fd->bsd', h, W_down)
    x = A_x
    mod = (_silu(c) @ w_mod).reshape(c.shape[0], 6, 1, -1)
    sa, ca, ga, sb, cb, gb = (mod[:, 0].clone(), mod[:, 1].clone(), mod[:, 2].clone(), mod[:, 3].clone(), mod[:, 4].clone(), mod[:, 5].clone())
    h = _layernorm(x, axis=-1) * (1 + ca) + sa
    x = x + ga * _A_ref(h, A_k_cache, A_v_cache, A_wq, A_wo)
    h = _layernorm(x, axis=-1) * (1 + cb) + sb
    x = x + gb * _B_ref(h, B_W_gate, B_W_up, B_W_down)
    return x
```

```python
from mb_gen import *
tests = []
def add(name, body, pre=(), iters=32):
    h, t, d = gen(name, body, iters=iters)
    i = t.index("    s_memrealtime s[34:35]")
    pre = ["s_mov_b32 s40, 0x7f000000", "v_lshrrev_b32 v3, 1, v2", "v_add_u32 v3, 0x10000, v3", "v_mov_b32 v112, 0", "v_mov_b32 v113, 0",
           "v_mov_b32 v115, 0", "v_mov_b32 v116, 0", "v_add_u32 v114, s21, v2"] + list(pre)
    t[i:i] = ["    " + x for x in pre]
    j = t.index(f"L_end_{name}:")
    t[j:j] = [f"L_never{name}:"]
    tests.append((h, t, d))

def sm_seq(S, P, l, T=96):
    seq = []
    for r in range(16):
        t = T + (r % 8)
        seq.append(("e", f"v_exp_f32 v{t}, v{S+r}"))
        if r >= 1:
            seq.append(("a", f"v_add_f32 v{l}, v{l}, v{T+((r-1)%8)}"))
        if r >= 2 and r % 2 == 0:
            seq.append(("c", f"v_cvt_pk_bf16_f32 v{P+(r-2)//2}, v{T+((r-2)%8)}, v{T+((r-1)%8)}"))
    seq.append(("a", f"v_add_f32 v{l}, v{l}, v{T+7}"))
    seq.append(("c", f"v_cvt_pk_bf16_f32 v{P+7}, v{T+6}, v{T+7}"))
    seq.append(("a", f"v_cmp_lt_f32 vcc, s40, v{l}"))
    return seq

def pack(seq, ngaps, cap):
    cost = {"e": 8, "a": 4, "c": 4}
    E = [x for x in seq if x[0] == "e"]; O = [x for x in seq if x[0] != "e"]
    gaps = [[] for _ in range(ngaps)]
    return gaps

def unit16(q, tag, valu=True, lds=True, dma=True, bar=False):
    b = q & 1; ob = 1 - b
    S = [16, 32]; P = [80, 88]
    mf = []
    for kb in range(4):
        for ks in range(4):
            d = S[b] + 4*kb
            c = f"v[{48+4*q}:{51+4*q}]" if ks == 0 else f"v[{d}:{d+3}]"
            kf = 192 + 16*kb + 4*ks
            qf = 128 + 16*q + 4*ks
            mf.append(f"v_mfma_f32_16x16x32_bf16 v[{d}:{d+3}], a[{kf}:{kf+3}], a[{qf}:{qf+3}], {c}")
    for db in range(8):
        for ks in range(2):
            o = 32*q + 4*db
            vf = 128 + 8*db + 4*ks
            mf.append(f"v_mfma_f32_16x16x32_bf16 a[{o}:{o+3}], v[{vf}:{vf+3}], v[{P[b]+4*ks}:{P[b]+4*ks+3}], a[{o}:{o+3}]")
    first = [[] for _ in range(32)]
    gaps = [[] for _ in range(32)]
    if valu:
        T = 96; l = 112 + ob
        plain = []
        ev = list(range(16))
        g = 0
        sched = []
        plan = ["e", "e"] + ["p", "e", "e", "p", "p", "e", "e", "p"] * 4
        plan = plan[:32]
        done_e = 0; adds = 0; cvts = 0; cmpd = False
        for g in range(32):
            if plan[g] == "e" and done_e < 16:
                gaps[g].append(f"v_exp_f32 v{T+done_e%8}, v{S[ob]+done_e}"); done_e += 1
            else:
                n = 0
                while n < 2:
                    if cvts < 8 and 2*cvts+1 < done_e and 2*cvts + 2 <= adds + 1:
                        gaps[g].append(f"v_cvt_pk_bf16_f32 v{P[ob]+cvts}, v{T+(2*cvts)%8}, v{T+(2*cvts+1)%8}"); cvts += 1
                    elif adds < done_e:
                        gaps[g].append(f"v_add_f32 v{l}, v{l}, v{T+adds%8}"); adds += 1
                    elif cvts < 8 and 2*cvts+1 < done_e:
                        gaps[g].append(f"v_cvt_pk_bf16_f32 v{P[ob]+cvts}, v{T+(2*cvts)%8}, v{T+(2*cvts+1)%8}"); cvts += 1
                    elif adds == 16 and not cmpd:
                        gaps[g].append(f"v_cmp_lt_f32 vcc, s40, v{l}"); cmpd = True
                    else:
                        break
                    n += 1
        assert done_e == 16 and adds == 16 and cvts == 8 and cmpd, (done_e, adds, cvts, cmpd)
        first[31].append(f"s_cbranch_vccnz L_never{tag}")
    if lds:
        if q == 3:
            for i in range(16):
                first[i + 1 if i < 15 else 16].append(f"ds_read_b128 a[{192+4*i}:{195+4*i}], v2 offset:{i*1024}")
            for j in range(14):
                first[17 + j].append(f"ds_read_b64_tr_b16 v[{128+2*j}:{129+2*j}], v3 offset:{j*512}")
            gaps[31].append("s_waitcnt lgkmcnt(14)")
        if q == 0:
            for j in range(14, 32):
                first[j - 14].append(f"ds_read_b64_tr_b16 v[{128+2*j}:{129+2*j}], v3 offset:{j*512}")
            first[18].append("s_waitcnt lgkmcnt(8)")
            first[24].append("s_waitcnt lgkmcnt(0)")
    if dma and q in (1, 2):
        for i in range(4):
            first[4 + 6*i].append(f"buffer_load_dwordx4 v114, s[8:11], s22 offen offset:{i*1024} lds")
    if bar and q == 1:
        first[0].append("s_waitcnt vmcnt(8)")
        first[1].append("s_barrier")
        first[2].append("s_add_u32 s22, s22, 16384")
        first[3].append("s_and_b32 s22, s22, 0xffffff")
    out = []
    for m, f, g in zip(mf, first, gaps):
        out.append(m); out += f; out += g
    return out

def unit32(b, kb, tag, valu=True, lds=True, dma=True, bar=False):
    S = [16, 32]; NM = [48, 64]; P = [80, 88]
    mf = []
    for s in range(8):
        c = f"v[{NM[b]}:{NM[b]+15}]" if s == 0 else f"v[{S[b]}:{S[b]+15}]"
        mf.append(f"v_mfma_f32_32x32x16_bf16 v[{S[b]}:{S[b]+15}], a[{192+4*s}:{195+4*s}], a[{128+32*b+4*s}:{131+32*b+4*s}], {c}")
    for ks in range(2):
        for db in range(4):
            o = 64*b + 16*db
            f = 224 + 16*ks + 4*db
            mf.append(f"v_mfma_f32_32x32x16_bf16 a[{o}:{o+15}], a[{f}:{f+3}], v[{P[b]+4*ks}:{P[b]+4*ks+3}], a[{o}:{o+15}]")
    first = [[] for _ in range(16)]
    gaps = [[] for _ in range(16)]
    ob = 1 - b; T = 96; l = 112 + ob
    if valu:
        done_e = 0; adds = 0; cvts = 0
        for g in range(16):
            ne = 2 if g in (0, 5, 10) else 1
            pe = done_e
            for _ in range(ne):
                if done_e < 16:
                    gaps[g].append(f"v_exp_f32 v{T+done_e%8}, v{S[ob]+done_e}"); done_e += 1
            while adds < pe:
                gaps[g].append(f"v_add_f32 v{l}, v{l}, v{T+adds%8}"); adds += 1
            while 2*cvts+1 < pe:
                gaps[g].append(f"v_cvt_pk_bf16_f32 v{P[ob]+cvts}, v{T+(2*cvts)%8}, v{T+(2*cvts+1)%8}"); cvts += 1
            if g == 14: gaps[g].append(f"v_cmp_lt_f32 vcc, s40, v{l}")
        assert done_e == 16 and adds == 16 and cvts == 8
        gaps[15].append(f"s_cbranch_vccnz L_never{tag}")
    if lds:
        if b == 1:
            for s in range(8):
                first[s].append(f"ds_read_b128 a[{192+4*s}:{195+4*s}], v2 offset:{kb*8192 + s*1024}")
            for i in range(8):
                first[8+i].append(f"ds_read_b64_tr_b16 a[{224+2*i}:{225+2*i}], v3 offset:{i*512}")
            gaps[15].insert(0, "s_waitcnt lgkmcnt(8)")
        else:
            for i in range(8):
                first[i].append(f"ds_read_b64_tr_b16 a[{240+2*i}:{241+2*i}], v3 offset:{4096 + i*512}")
            gaps[7].append("s_waitcnt lgkmcnt(8)")
            first[11].append("s_waitcnt lgkmcnt(0)")
    if dma and b == 0:
        for i in range(4):
            first[8 + 2*i].append(f"buffer_load_dwordx4 v114, s[8:11], s22 offen offset:{i*1024} lds")
    if bar and b == 0 and kb == 1:
        first[9].append("s_waitcnt vmcnt(8)")
        first[9].append("s_barrier")
        first[13].append("s_add_u32 s22, s22, 16384")
        first[15].append("s_and_b32 s22, s22, 0xffffff")
    out = []
    for m, f, g in zip(mf, first, gaps):
        out.append(m); out += f; out += g
    return out

def t16(tag, **kw):
    return sum([unit16(q, tag, **kw) for q in range(4)], [])
def t32(tag, **kw):
    return sum([unit32(b, kb, tag, **kw) for kb in range(2) for b in range(2)], [])
for nm, f in (("m16", t16), ("m32", t32)):
    add(f"a_{nm}_bare", f(f"a_{nm}_bare", valu=False, lds=False, dma=False))
    add(f"b_{nm}_valu", f(f"b_{nm}_valu", valu=True, lds=False, dma=False))
    add(f"c_{nm}_lds", f(f"c_{nm}_lds", valu=True, lds=True, dma=False))
    add(f"d_{nm}_all", f(f"d_{nm}_all", valu=True, lds=True, dma=True, bar=True))
    add(f"e_{nm}_novalu", f(f"e_{nm}_novalu", valu=False, lds=True, dma=True, bar=True))
open("mb4.s", "w").write(assemble(tests))
```

```python
import sys
def gen(name, body, iters=64, waves=4, nvgpr=512, lds=131072):
    acc = 256 if nvgpr > 256 else 128
    s = []
    s.append(f"; @launch kernel={name}_kernel grid=(256,1,1) block=({waves*64},1,1) lds={lds}")
    h = s
    t = []
    t.append(f".globl {name}_kernel\n.p2align 8\n.type {name}_kernel,@function\n{name}_kernel:")
    t.append("""
    s_cmp_ge_u32 s2, 256
    s_cbranch_scc1 L_end_%s
    s_load_dwordx2 s[4:5], s[0:1], 8
    s_load_dwordx2 s[6:7], s[0:1], 104
    s_waitcnt lgkmcnt(0)
    s_mov_b32 s8, s4
    s_mov_b32 s9, s5
    s_mov_b32 s10, 0x1000000
    s_mov_b32 s11, 0x20000
    s_mov_b32 s12, s6
    s_mov_b32 s13, s7
    s_mov_b32 s14, 0x100000
    s_mov_b32 s15, 0x20000
    v_lshlrev_b32 v1, 4, v0
    v_and_b32 v2, 63, v0
    v_lshlrev_b32 v2, 4, v2
    v_lshrrev_b32 v3, 6, v0
    s_nop 1
    v_readfirstlane_b32 s20, v3
    s_nop 3
    s_lshl_b32 s21, s20, 12
    s_and_b32 s22, s2, 7
    s_lshl_b32 s22, s22, 21
    s_mov_b32 s23, 0
""" % name)
    nv = acc
    for r in range(4, nv, 4):
        t.append(f"    buffer_load_dwordx4 v[{r}:{r+3}], v1, s[8:11], s23 offen")
        t.append(f"    s_add_u32 s23, s23, 8192")
        if (r // 4) % 32 == 31: t.append("    s_waitcnt vmcnt(0)")
    for r in range(0, nvgpr - acc, 4):
        t.append(f"    buffer_load_dwordx4 a[{r}:{r+3}], v1, s[8:11], s23 offen")
        t.append(f"    s_add_u32 s23, s23, 8192")
        if (r // 4) % 32 == 31: t.append("    s_waitcnt vmcnt(0)")
    t.append("    s_waitcnt vmcnt(0)")
    t.append("    s_mov_b32 s24, 0")
    t.append(f"L_fill_{name}:")
    t.append("    s_add_u32 m0, s24, s21")
    t.append("    s_nop 0")
    for o in range(0, 4096, 1024):
        t.append(f"    buffer_load_dwordx4 v2, s[8:11], s24 offen offset:{o} lds")
    t.append(f"    s_add_u32 s24, s24, {waves*4096}")
    t.append(f"    s_cmp_lt_u32 s24, {lds}")
    t.append(f"    s_cbranch_scc1 L_fill_{name}")
    t.append("    s_waitcnt vmcnt(0)")
    t.append("    s_barrier")
    t.append("    s_mov_b32 s25, 0")
    t.append("    s_mov_b32 m0, s21")
    t.append("    s_memrealtime s[34:35]")
    t.append("    s_memtime s[30:31]")
    t.append("    s_waitcnt lgkmcnt(0)")
    t.append(".p2align 6")
    t.append(f"L_loop_{name}:")
    t += ["    " + x for x in body]
    t.append("    s_add_u32 s25, s25, 1")
    t.append(f"    s_cmp_lt_u32 s25, {iters}")
    t.append(f"    s_cbranch_scc1 L_loop_{name}")
    t.append("    s_waitcnt vmcnt(0) lgkmcnt(0)")
    t.append("    s_memtime s[32:33]")
    t.append("    s_memrealtime s[36:37]")
    t.append("    s_waitcnt lgkmcnt(0)")
    t.append("    s_sub_u32 s32, s32, s30")
    t.append("    s_sub_u32 s36, s36, s34")
    t.append("    v_mov_b32 v4, s32")
    t.append("    v_mov_b32 v5, s36")
    t.append(f"    s_mul_i32 s26, s2, {waves*8}")
    t.append("    s_lshl_b32 s27, s20, 3")
    t.append("    s_add_u32 s26, s26, s27")
    t.append("    v_mov_b32 v6, s26")
    t.append("    v_cmp_eq_u32 vcc, 0, v2")
    t.append("    s_and_saveexec_b64 s[28:29], vcc")
    t.append("    buffer_store_dwordx2 v[4:5], v6, s[12:15], 0 offen")
    t.append("    s_waitcnt vmcnt(0)")
    t.append(f"L_end_{name}:")
    t.append("    s_endpgm")
    d = f"""
.amdhsa_kernel {name}_kernel
  .amdhsa_next_free_vgpr {nvgpr}
  .amdhsa_next_free_sgpr 64
  .amdhsa_accum_offset {acc}
  .amdhsa_group_segment_fixed_size 0
  .amdhsa_kernarg_size 112
  .amdhsa_user_sgpr_count 2
  .amdhsa_user_sgpr_kernarg_segment_ptr 1
  .amdhsa_system_sgpr_workgroup_id_x 1
.end_amdhsa_kernel
"""
    return h, t, d

def assemble(tests):
    H, T, D = [], [], []
    for h, t, d in tests:
        H += h; T += t; D.append(".p2align 6" + d)
    return "\n".join(H) + '\n.amdgcn_target "amdgcn-amd-amdhsa--gfx950"\n.text\n' + "\n".join(T) + '\n.section .rodata,"a"\n' + "\n".join(D)
```

```python
from mb_gen import *
tests = []
def add(name, body, pre=(), iters=32):
    h, t, d = gen(name, body, iters=iters)
    i = t.index("    s_memrealtime s[34:35]")
    pre = ["s_mov_b32 s40, 0x7f000000", "v_lshrrev_b32 v3, 1, v2", "v_add_u32 v3, 0x10000, v3", "v_add_u32 v114, s21, v2"] + list(pre)
    pre += [f"v_mov_b32 v{r}, 0" for r in range(232, 256)]
    pre += [f"v_mov_b32 v{r}, 0x3f803f80" for r in range(228, 232)]
    t[i:i] = ["    " + x for x in pre]
    j = t.index(f"L_end_{name}:")
    t[j:j] = [f"L_never{name}:"]
    tests.append((h, t, d))

def tile16(tag, ones_q=(0,1,2,3), dma=True, bar=True, lds=True):
    S = lambda q: 16 + 16*q
    NM = lambda q: 80 + 4*q
    P = lambda q: 192 + 8*q
    T = 96
    mf = []
    unit_start = []
    pvstart = []
    for u in range(4):
        unit_start.append(len(mf))
        q2 = (u + 2) % 4
        if u in ones_q:
            l = 232 + 4*u
            for ks in range(2):
                mf.append(f"v_mfma_f32_16x16x32_bf16 v[{l}:{l+3}], v[228:231], v[{P(u)+4*ks}:{P(u)+4*ks+3}], v[{l}:{l+3}]")
        for kb in range(4):
            for ks in range(4):
                d = S(q2) + 4*kb
                c = f"v[{NM(q2)}:{NM(q2)+3}]" if ks == 0 else f"v[{d}:{d+3}]"
                kf = 192 + 16*kb + 4*ks; qf = 128 + 16*q2 + 4*ks
                mf.append(f"v_mfma_f32_16x16x32_bf16 v[{d}:{d+3}], a[{kf}:{kf+3}], a[{qf}:{qf+3}], {c}")
        pvstart.append(len(mf))
        for db in range(8):
            for ks in range(2):
                o = 32*u + 4*db; vf = 128 + 8*db + 4*ks
                mf.append(f"v_mfma_f32_16x16x32_bf16 a[{o}:{o+3}], v[{vf}:{vf+3}], v[{P(u)+4*ks}:{P(u)+4*ks+3}], a[{o}:{o+3}]")
    N = len(mf)
    sal = [[] for _ in range(N)]; ds = [[] for _ in range(N)]; va = [[] for _ in range(N)]
    room = [8]*N
    if lds:
        k0 = pvstart[1] - 16
        for i in range(16):
            g = k0 + 1 + 2*i - (i // 4)
            ds[g].append(f"ds_read_b128 a[{192+4*i}:{195+4*i}], v2 offset:{i*1024}"); room[g] -= 4
        kn = pvstart[2] - 16
        for i in range(0, 16, 4):
            pass
        sal[kn - 1].append("s_waitcnt lgkmcnt(2)")
        sal[kn + 7].append("s_waitcnt lgkmcnt(0)")
        v0 = pvstart[3]
        for j in range(32):
            g = (v0 + 1 + j) % N
            ds[g].append(f"ds_read_b64_tr_b16 v[{128+2*j}:{129+2*j}], v3 offset:{j*512}"); room[g] -= 4
        sal[pvstart[0] - 1].append("s_waitcnt lgkmcnt(8)")
        sal[pvstart[0] + 7].append("s_waitcnt lgkmcnt(0)")
    if dma:
        cand = [pvstart[0] + 9, pvstart[0] + 11, pvstart[0] + 13, pvstart[0]+15, pvstart[2] + 1, pvstart[2] + 3, pvstart[2] + 5, pvstart[2] + 7]
        for i, g in enumerate(cand):
            assert room[g] == 8
            ds[g].append(f"buffer_load_dwordx4 v114, s[8:11], s22 offen offset:{(i%4)*1024} lds"); room[g] = 0
    if bar:
        g = pvstart[0] + 2
        sal[g].append("s_waitcnt vmcnt(8)"); sal[g+1].append("s_barrier"); sal[g+2].append("s_add_u32 s22, s22, 16384"); sal[g+3].append("s_and_b32 s22, s22, 0xffffff")
    work = []
    for u in range(4):
        q = (u + 1) % 4
        useadd = q not in ones_q
        l = 232 + 4*q
        seq = []
        for r in range(16):
            seq.append(("e", f"v_exp_f32 v{T+r%8}, v{S(q)+r}", r))
            if r % 2 == 1:
                if useadd:
                    seq.append(("a", f"v_add_f32 v{l}, v{l}, v{T+(r-1)%8}", r)); seq.append(("a", f"v_add_f32 v{l}, v{l}, v{T+r%8}", r))
                seq.append(("a", f"v_cvt_pk_bf16_f32 v{P(q)+r//2}, v{T+(r-1)%8}, v{T+r%8}", r))
        work.append(seq)
    E = [x + (u,) for u in range(4) for x in work[u] if x[0] == "e"]
    A = [x + (u,) for u in range(4) for x in work[u] if x[0] == "a"]
    for u in range(4):
        g = pvstart[u] - 3
        while room[g] < 4: g -= 1
        va[g].append(f"v_cmp_lt_f32 vcc, s40, v{232+4*u}"); room[g] -= 4
        gg = pvstart[u] - 2
        sal[gg].append(f"s_cbranch_vccnz L_never{tag}")
    ei = ai = 0
    egap = {}
    tot_need = 8*len(E) + 4*len(A); tot_room = sum(room)
    over = max(0, tot_need - tot_room)
    if over:
        k = over // 4 + 2
        for i in range(k):
            room[(i * N) // k] += 4
    for g in range(N):
        while True:
            okA = ai < len(A) and (A[ai][3], A[ai][2]) in egap and egap[(A[ai][3], A[ai][2])] < g
            okE = False
            if ei < len(E):
                idx = ei
                need = idx - 8
                okE = True
                if need >= 0:
                    u0, r0 = E[need][3], E[need][2] | 1
                    okE = all(i < ai for i, x in enumerate(A) if x[3] == u0 and x[2] == r0)
            behind = ei * N < len(E) * (g + 2)
            if okE and room[g] >= 8 and (behind or not okA):
                va[g].append(E[ei][1]); egap[(E[ei][3], E[ei][2])] = g; ei += 1; room[g] -= 8
            elif okA and room[g] >= 4:
                va[g].append(A[ai][1]); ai += 1; room[g] -= 4
            else:
                break
    rest = [x[1] for x in E[ei:]] + [x[1] for x in A[ai:]]
    print(tag, "N", N, "need", tot_need, "room", tot_room, "leftover", len(rest))
    va[N-1] += rest
    out = []
    for g in range(N):
        out.append(mf[g]); out += sal[g]; out += ds[g]; out += va[g]
    return out
add("b_adds", tile16("b_adds", ones_q=()))
add("c_ones", tile16("c_ones"))
add("d_hyb", tile16("d_hyb", ones_q=(0, 2)))
add("e_hyb3", tile16("e_hyb3", ones_q=(0, 1, 2)))
add("f_ones_nodma", tile16("f_ones_nodma", dma=False, bar=False))
import mb4
for h, t, d in mb4.tests:
    if "d_m32_all" in h[0] or "a_m16" in h[0]:
        tests.append((h, t, d))
open("mb7.s", "w").write(assemble(tests))
```

```python
import re

def vr(b, n=1, t="v"):
    return f"{t}{b}" if n == 1 else f"{t}[{b}:{b+n-1}]"
def ar(b, n=1):
    return vr(b, n, "a")
def sr(b, n=1):
    return vr(b, n, "s")

class Prog:
    def __init__(self):
        self.lines = []
        self.vm = []
    def __call__(self, *ins):
        for i in ins:
            if isinstance(i, (list, tuple)):
                self(*i)
            else:
                self.lines.append(i)
    def label(self, l):
        self.lines.append(l + ":")
    def vmem(self, ins, tag=None):
        self.lines.append(ins)
        self.vm.append(tag)
    def vmwait_n(self, tags):
        last = -1
        for i, t in enumerate(self.vm):
            if t in tags:
                last = i
        assert last >= 0, tags
        return len(self.vm) - 1 - last
    def text(self):
        out = []
        for l in self.lines:
            if l.endswith(":") or l.startswith("."):
                out.append(l)
            else:
                out.append("    " + l)
        return "\n".join(out) + "\n"

_REG = re.compile(r"\b([vas])(?:(\d+)|\[(\d+):(\d+)\])")
def regs_of(op):
    out = set()
    for m in _REG.finditer(op):
        t = m.group(1)
        if m.group(2) is not None:
            out.add((t, int(m.group(2))))
        else:
            for r in range(int(m.group(3)), int(m.group(4)) + 1):
                out.add((t, r))
    if re.search(r"\bvcc\b", op): out.add(("s", "vcc"))
    if re.search(r"\bm0\b", op): out.add(("s", "m0"))
    if re.search(r"\bexec\b", op): out.add(("s", "exec"))
    return out

TRANS = ("v_exp_", "v_log_", "v_rcp_", "v_rsq_", "v_sqrt_", "v_sin_", "v_cos_")
class Ins:
    def __init__(self, text):
        self.text = text
        t = text.split(";")[0].strip()
        parts = t.split(None, 1)
        self.op = parts[0]
        rest = parts[1] if len(parts) > 1 else ""
        ops = [o.strip() for o in rest.split(",")]
        self.ops = ops
        op = self.op
        self.kind = "salu"
        self.w = set(); self.r = set()
        self.states = 1
        self.passes = 0
        if op == "s_nop":
            self.states = int(ops[0], 0) + 1
        if op.startswith("v_mfma"):
            self.kind = "mfma"
            self.passes = 8 if "32x32" in op else 4
            self.w = regs_of(ops[0]); self.A = regs_of(ops[1]); self.B = regs_of(ops[2]); self.C = regs_of(ops[3])
            self.r = self.A | self.B | self.C
        elif op.startswith("v_"):
            self.kind = "valu"
            self.w = regs_of(ops[0])
            for o in ops[1:]:
                self.r |= regs_of(o)
            if op.startswith(("v_fmac", "v_dot2c")): self.r |= self.w
            if op.startswith("v_permlane") and "swap" in op:
                self.r |= self.w; self.w = self.w | regs_of(ops[1])
            if op.startswith(("v_add_co", "v_addc_co", "v_sub_co", "v_subb_co")):
                self.w |= regs_of(ops[1])
            if op.startswith("v_cndmask") and len(ops) == 3:
                self.r.add(("s", "vcc"))
            if op.startswith("v_cmpx"): self.w.add(("s", "exec"))
        elif op.startswith("ds_"):
            self.kind = "ds"
            if "read" in op or "bpermute" in op or "swizzle" in op:
                self.w = regs_of(ops[0])
                for o in ops[1:]: self.r |= regs_of(o.split(" offset")[0])
            else:
                for o in ops: self.r |= regs_of(o.split(" offset")[0])
        elif op.startswith(("buffer_", "global_")):
            self.kind = "vmem"
            lds = " lds" in (" " + rest) or "load_lds" in op
            self.lds = lds
            if op in ("buffer_inv", "buffer_wbl2"):
                pass
            elif "load" in op and not lds:
                self.w = regs_of(ops[0])
                for o in ops[1:]: self.r |= regs_of(o)
            else:
                for o in ops: self.r |= regs_of(o)
                if lds: self.r.add(("s", "m0"))
            self.store_data = set()
            if "store" in op and ("x3" in op or "x4" in op):
                self.store_data = regs_of(ops[0] if op.startswith("buffer") else ops[1])
        else:
            if op.startswith(("s_cmp", "s_cbranch", "s_branch", "s_waitcnt", "s_barrier", "s_nop", "s_endpgm", "s_setprio", "s_sleep", "s_setpc", "s_bitcmp")):
                for o in ops: self.r |= regs_of(o)
            else:
                self.w = regs_of(ops[0])
                for o in ops[1:]: self.r |= regs_of(o)
                if "saveexec" in op: self.w.add(("s", "exec"))
        self.trans = op.startswith(TRANS)

def need(p, c):
    n = 0
    vw = {x for x in p.w if x[0] in "va"}
    sw = {x for x in p.w if x[0] == "s"}
    if p.kind == "valu":
        if c.kind == "mfma" and vw & c.r: n = max(n, 2)
        if c.kind == "valu":
            if p.trans and not c.trans and vw & c.r: n = max(n, 1)
            if p.trans and c.trans and vw & c.r: n = max(n, 1)
            if c.op.startswith("v_permlane") and vw & c.r: n = max(n, 2)
            if ("dpp" in c.text or "row_" in c.text or "quad_perm" in c.text) and vw & c.r: n = max(n, 2)
            if c.op.startswith(("v_readfirstlane", "v_readlane")) and vw & c.r: n = max(n, 1)
            if sw & c.r: n = max(n, 2)
            if c.op.startswith(("v_readlane", "v_writelane")) and sw & c.r: n = max(n, 4)
            if ("s", "exec") in sw and c.op.startswith(("v_readfirstlane", "v_readlane", "v_permlane")): n = max(n, 4)
            if "sdwa" in p.op and vw & c.r: n = max(n, 1)
        if p.op.startswith("v_dot") and vw & (c.r | c.w):
            same = c.op == p.op
            if not same or (vw & (regs_of(c.ops[1]) | regs_of(c.ops[2]))): n = max(n, 3)
        if c.kind == "vmem" and sw & c.r: n = max(n, 5)
        if c.kind == "mfma" and ("s", "exec") in sw: n = max(n, 4)
    if p.kind == "mfma":
        tab = {4: (0, 6, 8, 8, 3), 8: (0, 10, 12, 12, 7)}[p.passes]
        if c.kind == "mfma":
            if p.w & c.C:
                n = max(n, tab[0] if (p.w == c.C and p.passes == c.passes) else tab[1])
            if p.w & (c.A | c.B): n = max(n, tab[2])
            if p.w & c.w and not (p.w & c.C): n = max(n, tab[1])
        elif c.kind in ("valu", "vmem", "ds"):
            if p.w & (c.r | c.w): n = max(n, tab[3])
            if c.kind == "valu" and p.C & c.w: n = max(n, tab[4])
    if p.kind == "salu" and ("s", "m0") in p.w and c.kind == "vmem" and getattr(c, "lds", False): n = max(n, 1)
    if p.kind == "vmem" and getattr(p, "store_data", None) and p.store_data & c.w:
        n = max(n, 2 if c.kind == "valu" else 1)
    return n

def check_linear(lines, ctx=""):
    ins = [Ins(l) for l in lines if not (l.endswith(":") or l.startswith(".") or l.startswith(";"))]
    bad = 0
    for j, c in enumerate(ins):
        dist = 0
        i = j - 1
        while i >= 0 and dist < 20:
            p = ins[i]
            n = need(p, c)
            if n > dist:
                print(f"HAZARD {ctx}: need {n} have {dist}:\n   {p.text}\n   {c.text}")
                bad += 1
            dist += p.states
            i -= 1
    return bad
```

```python
import sys
from layout import *
import k2
def build(kernels, path):
    ref = open("cdna_kernels/" + NAME + ".s.ref").read()
    head = [l for l in ref.splitlines() if l.startswith(";") and "@launch" not in l and "Override" not in l and "grid=ceil" not in l]
    out = list(head)
    for nm, (txt, cfg) in kernels:
        out.append(f"; @launch kernel={nm} grid=({cfg['grid']},1,1) block=({cfg['block']},1,1) lds={cfg['lds']}")
    out.append('.amdgcn_target "amdgcn-amd-amdhsa--gfx950"\n.text')
    for nm, (txt, cfg) in kernels:
        out.append(f".globl {nm}\n.p2align 8\n.type {nm},@function\n" + txt)
    out.append('.section .rodata,"a"')
    for nm, (txt, cfg) in kernels:
        out.append(f""".p2align 6
.amdhsa_kernel {nm}
  .amdhsa_next_free_vgpr {cfg['vgpr']}
  .amdhsa_next_free_sgpr {cfg['sgpr']}
  .amdhsa_accum_offset {cfg['acc']}
  .amdhsa_group_segment_fixed_size 0
  .amdhsa_kernarg_size 112
  .amdhsa_user_sgpr_count 2
  .amdhsa_user_sgpr_kernarg_segment_ptr 1
  .amdhsa_system_sgpr_workgroup_id_x 1
.end_amdhsa_kernel""")
    open(path, "w").write("\n".join(out) + "\n")
if __name__ == "__main__":
    import k1, k35, k4
    for st, path in ((False, "cdna_kernels/" + NAME + ".s"), (True, "allstamp.s")):
        build([("prep_kernel", k1.gen_k1("prep_kernel", stamp=st)), ("attn_kernel", k2.gen_k2("attn_kernel", stamp=st)),
               ("oproj_kernel", k35.gen_skinny("oproj_kernel", 3, stamp=st)), ("ffn1_kernel", k4.gen_k4("ffn1_kernel", stamp=st)),
               ("ffn2_kernel", k35.gen_skinny("ffn2_kernel", 5, stamp=st))], path)
```

```python
from asmlib import *
from sched import *
from layout import *
import math, struct
def f32(x): return "0x%08x" % struct.unpack("<I", struct.pack("<f", x))[0]
QSCALE = math.log2(math.e) / math.sqrt(128.0)

def srd(p, d, lo, hi, size, off=None):
    if off is None:
        p(f"s_mov_b32 s{d}, s{lo}", f"s_mov_b32 s{d+1}, s{hi}")
    else:
        p(f"s_add_u32 s{d}, s{lo}, {off}", f"s_addc_u32 s{d+1}, s{hi}, 0")
    p(f"s_mov_b32 s{d+2}, {size}", f"s_mov_b32 s{d+3}, 0x20000")

def gen_k1(name, stamp=False, touch=True, SC_='sc1', sleep=2):
    p = Prog()
    SX, SC, SM, SWS, SD, ST_ = 8, 12, 16, 20, 24, 28
    W0 = 16
    CK = 80
    AC = 112
    T = 16
    def ST(i): return [f"s_memtime s[{64+2*i}:{65+2*i}]"] if stamp else []
    p.label(name)
    if stamp: p("s_memrealtime s[80:81]")
    p(ST(0), ST(1), ST(2))
    p("s_cmp_ge_u32 s2, 256", f"s_cbranch_scc1 {name}_exit",
      "s_load_dwordx8 s[48:55], s[0:1], 0", "s_load_dwordx4 s[56:59], s[0:1], 72", "s_load_dwordx4 s[4:7], s[0:1], 96")
    p("v_and_b32 v1, 63, v0", "v_lshrrev_b32 v2, 6, v0", "v_and_b32 v3, 15, v0", "v_bfe_u32 v4, v0, 4, 2", "v_and_b32 v5, 7, v0", "v_lshrrev_b32 v6, 3, v0")
    def touch_code():
        if not touch: return []
        out = ["s_and_b32 s40, s2, 7", "s_lshr_b32 s41, s2, 3",
               "v_lshlrev_b32 v7, 13, v6", "v_lshl_add_u32 v7, v5, 7, v7", "v_cmp_gt_u32 vcc, 160, v0", "v_mov_b32 v8, 0x4000000", "v_cndmask_b32 v7, v8, v7, vcc",
               "s_mul_i32 s42, s41, 163840", "s_lshl_b32 s43, s40, 10", "s_add_u32 s42, s42, s43",
               f"s_mov_b32 s{ST_}, s54", f"s_mov_b32 s{ST_+1}, s55", f"s_mov_b32 s{ST_+2}, 5242880", f"s_mov_b32 s{ST_+3}, 0x20000",
               f"buffer_load_dword v9, v7, {sr(ST_,4)}, s42 offen nt",
               "v_lshlrev_b32 v7, 7, v1", "v_cmp_eq_u32 vcc, 3, v2", "s_lshl_b32 s42, s40, 2", "s_and_b32 s43, s41, 3", "v_cndmask_b32 v7, v8, v7, vcc",
               "s_add_u32 s42, s42, s43", "s_lshl_b32 s42, s42, 19", "s_lshr_b32 s43, s41, 3", "s_lshl_b32 s43, s43, 13", "s_add_u32 s42, s42, s43",
               "s_bitcmp1_b32 s41, 2", "s_cselect_b32 s32, s52, s50", "s_cselect_b32 s33, s53, s51", "s_mov_b32 s34, 0x1000000", "s_mov_b32 s35, 0x20000",
               "buffer_load_dword v10, v7, s[32:35], s42 offen nt"]
        return out
    p("s_waitcnt lgkmcnt(0)")
    srd(p, SWS, 6, 7, 0x2C0000); srd(p, SD, 4, 5, 256)
    p("s_cmp_ge_u32 s2, 80", f"s_cbranch_scc1 {name}_cons")
    srd(p, SC, 56, 57, 1280); srd(p, SM, 58, 59, 4915200)
    p("s_cmp_ge_u32 s2, 20", "s_cselect_b32 s36, 1, 0", "s_cmp_ge_u32 s2, 40", "s_cselect_b32 s36, 0, s36",
      "s_sub_u32 s37, s2, 20", "s_cmp_ge_u32 s2, 20", "s_cselect_b32 s37, s37, s2",
      "s_lshl_b32 s38, s37, 7", f"s_mul_i32 s39, s36, {320*7680}", "s_add_u32 s38, s38, s39", "s_mul_i32 s39, s36, 640",
      "v_mul_u32_u24 v11, 7680, v6", "v_lshl_add_u32 v11, v5, 4, v11", "v_lshlrev_b32 v12, 1, v6")
    for i in range(16):
        p(f"buffer_load_ushort v{CK+i}, v12, {sr(SC,4)}, s39 offen offset:{80*i}")
    for i in range(16):
        if i == 8: p("s_cmp_lt_u32 s2, 40", f"s_cbranch_scc1 {name}_half")
        p(f"buffer_load_dwordx4 {vr(W0+4*i,4)}, v11, {sr(SM,4)}, s38 offen nt", f"s_add_u32 s38, s38, {40*7680}")
    p.label(f"{name}_half")
    nt = 2 if touch else 0
    p(f"s_waitcnt vmcnt(8)", f"s_mov_b32 s44, {f32(-math.log2(math.e))}")
    X = 120
    for h in range(2):
        rg = range(8*h, 8*h + 8)
        for i in rg: p(f"v_lshlrev_b32 v{CK+i}, 16, v{CK+i}")
        for i in rg: p(f"v_mul_f32 v{X+i%8}, s44, v{CK+i}")
        for i in rg: p(f"v_exp_f32 v{X+i%8}, v{X+i%8}")
        for i in rg: p(f"v_add_f32 v{X+i%8}, 1.0, v{X+i%8}")
        for i in rg: p(f"v_rcp_f32 v{X+i%8}, v{X+i%8}")
        for i in rg: p(f"v_mul_f32 v{X+i%8}, v{X+i%8}, v{CK+i}")
        for i in rg: p(f"v_cvt_pk_bf16_f32 v{CK+i}, v{X+i%8}, 0", f"v_cvt_pk_bf16_f32 v{CK+16+i}, 0, v{X+i%8}")
    p(f"s_waitcnt vmcnt(0)")
    p(ST(1))
    for i in range(16):
        if i == 8: p("s_cmp_lt_u32 s2, 40", f"s_cbranch_scc1 {name}_red")
        for j in range(4):
            for h in range(2):
                a = AC + 2*j + h
                p(f"v_dot2_f32_bf16 v{a}, v{W0+4*i+j}, v{CK+16*h+i}, {'v%d' % a if i else 0}")
    p.label(f"{name}_red")
    p("s_nop 2")
    for a in range(AC, AC+8): p(f"v_add_f32_dpp v{a}, v{a}, v{a} row_ror:8 row_mask:0xf bank_mask:0xf")
    for a in range(AC, AC+4): p(f"v_permlane32_swap_b32 v{a}, v{a+4}")
    for a in range(AC, AC+4): p(f"v_add_f32 v{a}, v{a}, v{a+4}")
    for a in range(AC, AC+2): p(f"v_permlane16_swap_b32 v{a}, v{a+2}")
    for a in range(AC, AC+2): p(f"v_add_f32 v{a}, v{a}, v{a+2}")
    p("v_lshlrev_b32 v11, 8, v2", "v_lshl_add_u32 v11, v5, 5, v11", "v_lshl_add_u32 v11, v4, 3, v11", f"ds_write_b64 v11, {vr(AC,2)}",
      "v_readfirstlane_b32 s45, v2", "v_lshlrev_b32 v11, 2, v1", "s_waitcnt lgkmcnt(0)", "s_barrier",
      "s_cmp_lg_u32 s45, 0", f"s_cbranch_scc1 {name}_tch")
    p(ST(2))
    for w in range(5): p(f"ds_read_b32 v{W0+w}, v11 offset:{256*w}")
    p("s_waitcnt lgkmcnt(0)")
    for a, b in ((0,1),(2,3),(0,4),(0,2)): p(f"v_add_f32 v{W0+a}, v{W0+a}, v{W0+b}")
    p("s_cmp_ge_u32 s2, 40", f"s_cbranch_scc1 {name}_extra")
    p("s_lshl_b32 s38, s37, 8", "s_mul_i32 s39, s36, 5120", "s_add_u32 s38, s38, s39", f"s_add_u32 s38, s38, {WS_PART}",
      f"buffer_store_dword v{W0}, v11, {sr(SWS,4)}, s38 offen {SC_}", "v_mov_b32 v12, 1", "s_lshl_b32 s38, s2, 2", "v_mov_b32 v13, s38",
      "s_waitcnt vmcnt(0)", f"buffer_store_dword v12, v13, {sr(SD,4)}, 0 offen {SC_}", f"s_branch {name}_tch")
    p.label(f"{name}_extra")
    p(f"v_cvt_pk_bf16_f32 v{W0}, 0, v{W0}", f"v_add_f32 v{W0+1}, 1.0, v{W0}", f"v_cvt_pk_bf16_f32 v{W0+1}, 0, v{W0+1}",
      "s_lshl_b32 s38, s37, 8", f"s_add_u32 s38, s38, {WS_MOD}",
      "s_cmp_ge_u32 s37, 40", "s_cselect_b32 s42, 1, 0", "s_cmp_lt_u32 s37, 50", "s_cselect_b32 s42, s42, 0",
      "s_cmp_eq_u32 s42, 1", "s_cselect_b64 vcc, -1, 0", f"v_cndmask_b32 v{W0}, v{W0}, v{W0+1}, vcc",
      f"buffer_store_dword v{W0}, v11, {sr(SWS,4)}, s38 offen")
    p("s_cmp_lt_u32 s37, 30", f"s_cbranch_scc1 {name}_tch", "s_cmp_ge_u32 s37, 50", f"s_cbranch_scc1 {name}_tch")
    p("s_sub_u32 s43, s37, 30", "s_sub_u32 s44, s37, 40", "s_cmp_eq_u32 s42, 1", "s_cselect_b32 s43, s44, s43", "s_cselect_b32 s44, 0, 16",
      "s_lshl_b32 s43, s43, 11", "s_add_u32 s43, s43, s44", f"s_add_u32 s43, s43, {WS_CS}",
      "v_lshrrev_b32 v12, 5, v0", "v_lshlrev_b32 v12, 10, v12", "v_bfe_u32 v13, v0, 2, 2", "v_lshl_add_u32 v12, v13, 8, v12",
      "v_bfe_u32 v13, v0, 4, 1", "v_lshl_add_u32 v12, v13, 3, v12", "v_and_b32 v13, 3, v0", "v_lshl_add_u32 v12, v13, 1, v12",
      f"buffer_store_short_d16_hi v{W0}, v12, {sr(SWS,4)}, s43 offen", f"s_branch {name}_tch")
    p.label(f"{name}_cons")
    p("s_cmp_lt_u32 s2, 208", f"s_cbranch_scc1 {name}_cons2")
    p.label(f"{name}_tch")
    p(touch_code(), f"s_branch {name}_end")
    p.label(f"{name}_cons2")
    XR = 16; XF = 32; PS = 64
    srd(p, SX, 48, 49, 2621440)
    p("s_sub_u32 s36, s2, 80", "s_mul_i32 s36, s36, 20480",
      "v_mul_u32_u24 v11, 1280, v3", "v_lshl_add_u32 v11, v2, 8, v11", "v_lshl_add_u32 v11, v4, 3, v11")
    for i in range(8):
        p(f"buffer_load_dwordx2 {vr(XR+2*i,2)}, v11, {sr(SX,4)}, s36 offen offset:{32*i} nt")
    p(touch_code())
    p("v_mov_b32 v13, 0x3f803f80", "v_readfirstlane_b32 s45, v2", f"s_waitcnt vmcnt({nt})")
    p(ST(1))
    for i in range(16):
        p(f"v_dot2_f32_bf16 v14, v{XR+i}, v13, {'v14' if i else 0}", f"v_dot2_f32_bf16 v15, v{XR+i}, v{XR+i}, {'v15' if i else 0}")
    p("v_permlane32_swap_b32 v14, v15", "v_add_f32 v14, v14, v15", "v_mov_b32 v15, v14", "v_permlane16_swap_b32 v14, v15", "v_add_f32 v14, v14, v15")
    p("v_lshlrev_b32 v12, 7, v2", "v_lshl_add_u32 v12, v3, 3, v12", "v_lshrrev_b32 v15, 5, v1", "v_lshl_add_u32 v12, v15, 2, v12", "ds_write_b32 v12, v14")
    for i in range(16):
        p(f"v_lshlrev_b32 v{XF+2*i}, 16, v{XR+i}", f"v_and_b32 v{XF+2*i+1}, 0xffff0000, v{XR+i}")
    p("s_cmp_lg_u32 s45, 0", f"s_cbranch_scc1 {name}_polled", "v_lshlrev_b32 v12, 2, v1", "s_mov_b32 s46, -1", "s_mov_b32 s47, 0xff", "s_mov_b32 s37, 0")
    p.label(f"{name}_poll")
    if sleep: p(f"s_sleep {sleep}")
    p(f"buffer_load_dword v14, v12, {sr(SD,4)}, 0 offen {SC_}", "s_add_u32 s37, s37, 1", "s_waitcnt vmcnt(0)", "v_cmp_ne_u32 vcc, 0, v14",
      "s_cmp_gt_u32 s37, 0x40000", f"s_cbranch_scc1 {name}_polled",
      "s_cmp_eq_u64 vcc, s[46:47]", f"s_cbranch_scc0 {name}_poll")
    p.label(f"{name}_polled")
    p("s_waitcnt lgkmcnt(0)", "s_barrier")
    p(ST(2))
    p("v_lshlrev_b32 v12, 4, v0", f"s_mov_b32 s37, {WS_PART}", f"s_mov_b32 s38, {WS_PART + 5120}",
      f"buffer_load_dwordx4 {vr(PS,4)}, v12, {sr(SWS,4)}, s37 offen {SC_}", f"buffer_load_dwordx4 {vr(PS+4,4)}, v12, {sr(SWS,4)}, s38 offen {SC_}",
      "v_lshlrev_b32 v14, 3, v3")
    for w in range(5): p(f"ds_read_b64 {vr(PS+8+2*w,2)}, v14 offset:{128*w}")
    p("s_waitcnt lgkmcnt(0)")
    a = PS + 8
    for x, y in ((0,2),(4,6),(0,8),(0,4)): p(f"v_pk_add_f32 {vr(a+x,2)}, {vr(a+x,2)}, {vr(a+y,2)}")
    p(f"v_mul_f32 v{a}, {f32(1/640)}, v{a}", f"v_mul_f32 v{a+1}, {f32(1/640)}, v{a+1}", f"v_fma_f32 v{a+1}, -v{a}, v{a}, v{a+1}",
      f"v_max_f32 v{a+1}, 0, v{a+1}", f"v_add_f32 v{a+1}, {f32(1e-5)}, v{a+1}", f"v_rsq_f32 v{a+2}, v{a+1}", f"v_mul_f32 v{a}, v{a}, v{a+2}", f"v_sub_f32 v{a}, 0, v{a}")
    for i in range(0, 32, 2):
        p(f"v_pk_fma_f32 {vr(XF+i,2)}, {vr(XF+i,2)}, {vr(a+2,2)}, {vr(a,2)} op_sel_hi:[1,0,0]")
    p("v_cmp_le_u32 vcc, 160, v0", "v_cndmask_b32 v15, 0, 1.0, vcc", "s_waitcnt vmcnt(0)")
    for i in range(4):
        p(f"v_add_f32 v{PS+i}, v{PS+i}, v{PS+4+i}", f"v_cvt_pk_bf16_f32 v{PS+i}, 0, v{PS+i}", f"v_add_f32 v{PS+i}, v{PS+i}, v15",
          f"v_cvt_pk_bf16_f32 v{PS+i}, 0, v{PS+i}", f"v_mul_f32 v{PS+i}, {f32(QSCALE)}, v{PS+i}")
    p(f"ds_write_b128 v12, {vr(PS,4)} offset:1024", "v_lshlrev_b32 v14, 9, v2", "v_lshl_add_u32 v14, v4, 4, v14", "s_waitcnt lgkmcnt(0)", "s_barrier")
    for i in range(8):
        p(f"ds_read_b128 {vr(PS+4*i,4)}, v14 offset:{1024 + 64*i}", f"ds_read_b128 {vr(PS+32+4*i,4)}, v14 offset:{1024 + 2560 + 64*i}")
    p("v_lshlrev_b32 v11, 12, v2", "v_lshl_add_u32 v11, v1, 4, v11", f"s_add_u32 s36, s36, {WS_H1}")
    for t in range(4):
        p(f"s_waitcnt lgkmcnt({12 - 4*t})")
        for i in range(8*t, 8*t + 8, 2):
            p(f"v_pk_fma_f32 {vr(XF+i,2)}, {vr(XF+i,2)}, {vr(PS+32+i,2)}, {vr(PS+i,2)}")
        for i in range(4*t, 4*t + 4):
            p(f"v_cvt_pk_bf16_f32 v{XR+i}, v{XF+2*i}, v{XF+2*i+1}")
        p(f"buffer_store_dwordx4 {vr(XR+4*t,4)}, v11, {sr(SWS,4)}, s36 offen offset:{1024*t}")
    p.label(f"{name}_end")
    if stamp:
        p(ST(3), "s_waitcnt vmcnt(0)", ST(4), "s_memrealtime s[82:83]", "s_waitcnt lgkmcnt(0)", stamp_out(6, 5, 0))
    p.label(f"{name}_exit")
    p("s_endpgm")
    p.lines = fix_hazards(p.lines)
    return p.text(), dict(vgpr=128, acc=128, sgpr=96, lds=8192, grid=256, block=320)
```

```python
from asmlib import *
from sched import *
from layout import *

MM = "v_mfma_f32_16x16x32_bf16"
Q0 = 16
ACC = 80
S0 = 80
P0 = 112
NM0 = 128
L0 = 144
T0 = 176
X0 = 184
ONES = 208
KA = 212
VA = 216
DV = 224
WA = 226
WV = 238
HV = 242
OV = 246
JFA, JFB, JCS, JD = 200, 204, 226, 230
JVA, JVB, JROW, JC16, JTR, JL16, JTV, JTD = 247, 248, 249, 250, 251, 252, 253, 254
O0 = 0
KF = 128
VF = 192
SK, SV, SW, SH, SO = 8, 12, 16, 20, 24
sWAVE, sWOFF, sTILE, sCNT, sTHR, sRET = 28, 29, 30, 31, 32, 34
sH4 = 36
sTMP = 40
VBASE = 65536

def S(q, i=0, n=1): return vr(S0 + 8*q + i, n)
def P(q): return P0 + 4*q
def L(par, q): return L0 + 16*par + 4*q
def NM(q): return NM0 + 4*q

def qk_mfmas(par, q, first=False):
    out = []
    for kb in range(2):
        for ks in range(4):
            d = S(q, 4*kb, 4)
            c = d if ks else ("0" if first else vr(NM(q), 4))
            out.append(f"{MM} {d}, {ar(KF + 32*par + 16*kb + 4*ks, 4)}, {vr(Q0 + 16*q + 4*ks, 4)}, {c}")
    return out
def pv_mfmas(par, q):
    return [f"{MM} {ar(O0+32*q+4*db,4)}, {ar(VF+32*par+4*db,4)}, {vr(P(q),4)}, {ar(O0+32*q+4*db,4)}" for db in range(8)]
def ones_mfma(par, q):
    return f"{MM} {vr(L(par,q),4)}, {vr(ONES,4)}, {vr(P(q),4)}, {vr(L(1-par,q),4)}"
def k_reads(n):
    st = (n // 2) % 4; half = n % 2; par = n & 1
    return [f"ds_read_b128 {ar(KF+32*par+16*kb+4*ks,4)}, v{KA+ks} offset:{st*16384 + (2*half+kb)*4096}" for kb in range(2) for ks in range(4)]
def v_reads(n):
    st = (n // 2) % 4; half = n % 2; par = n & 1
    return [f"ds_read_b64_tr_b16 {ar(VF+32*par+4*db+2*jh,2)}, v{VA+db} offset:{st*16384 + half*8192 + jh*4096}" for db in range(8) for jh in range(2)]
def kv_dma(srd, soff):
    return [f"buffer_load_dwordx4 v{DV+(t&1)}, {sr(srd,4)}, {soff} offen offset:{t*1024} nt lds" for t in range(4)]
def exp_i(q, i): return f"v_exp_f32 v{T0+i}, {S(q,i)}"
def cvt_i(q, i): return f"v_cvt_pk_bf16_f32 v{P(q)+i}, v{T0+2*i}, v{T0+2*i+1}"

def emit_sched(p, seq):
    for text, t in seq:
        if text.startswith("WAITVM"):
            parts = text.split()
            tags = parts[1].split(",")
            n = p.vmwait_n(tags)
            assert n <= 63
            p(f"s_waitcnt vmcnt({n})" + (" lgkmcnt(0)" if len(parts) > 2 else ""))
        elif t is not None and t.kind == "vm":
            p.vmem(text, t.tag)
        else:
            p(text.split(" !! "))

def xmax(t, t2):
    return [f"v_mov_b32 v{t2}, v{t}", f"v_permlane32_swap_b32 v{t}, v{t2}", f"v_max_f32 v{t}, v{t}, v{t2}",
            f"v_mov_b32 v{t2}, v{t}", f"v_permlane16_swap_b32 v{t}, v{t2}", f"v_max_f32 v{t}, v{t}, v{t2}"]

def gen_k2(name, stamp=False, LEAD=3, LW=5, l2pf=True, k3map=(8, 4), side_on=True, stflag='sc1'):
    p = Prog()
    p.label(name)
    def ST(i):
        return [f"s_memtime s[{64+2*i}:{65+2*i}]"] if stamp else []
    if stamp: p("s_memrealtime s[80:81]")
    p(ST(0))
    p("s_cmp_ge_u32 s2, 256", f"s_cbranch_scc1 {name}_end",
      "s_load_dwordx4 s[4:7], s[0:1], 8", "s_load_dwordx2 s[40:41], s[0:1], 24", "s_load_dwordx2 s[42:43], s[0:1], 104",
      "s_load_dwordx4 s[56:59], s[0:1], 48", "s_load_dwordx2 s[90:91], s[0:1], 32", "s_load_dwordx2 s[92:93], s[0:1], 64")
    p("v_and_b32 v1, 63, v0", "v_lshrrev_b32 v2, 6, v0", "v_and_b32 v3, 15, v0", "v_bfe_u32 v4, v0, 4, 2",
      "v_bfe_u32 v5, v0, 2, 2", "v_and_b32 v6, 3, v0",
      f"v_readfirstlane_b32 s{sWAVE}, v2")
    p("s_and_b32 s44, s2, 7", "s_lshl_b32 s44, s44, 2", "s_bfe_u32 s45, s2, 0x20003", "s_or_b32 s44, s44, s45",
      "s_lshr_b32 s45, s2, 5")
    p(f"s_lshl_b32 s{sWOFF}, s{sWAVE}, 12")
    for i in range(4): p(f"s_mov_b32 s{sH4+i}, {4096*(i+1)}")
    p(f"s_mov_b32 s{sTHR}, 0x53800000")
    p("v_lshlrev_b32 v7, 1, v4", "v_xor_b32 v8, v3, v7", "v_xor_b32 v9, 8, v8",
      "v_lshl_add_u32 v10, v2, 4, v4")
    p("v_lshlrev_b32 v11, 13, v10")
    for t in range(4):
        p(f"v_lshl_add_u32 v{WV+t}, v{8+(t&1)}, 4, v11")
        if t: p(f"v_add_u32 v{WV+t}, {t*(4*8192-1024)}, v{WV+t}")
    p("v_lshlrev_b32 v11, 8, v10", f"v_lshl_add_u32 v{DV}, v8, 4, v11", f"v_lshl_add_u32 v{DV+1}, v9, 4, v11")
    p("v_mul_u32_u24 v11, 81920, v2", "v_lshl_add_u32 v11, v1, 4, v11")
    for q in range(4):
        p(f"v_add_u32 v{HV+q}, {q*20480}, v11")
    p("s_waitcnt lgkmcnt(0)")
    p("s_lshl_b32 s46, s44, 19",
      f"s_add_u32 s{SK}, s4, s46", f"s_addc_u32 s{SK+1}, s5, 0", f"s_mov_b32 s{SK+2}, 0x80000", f"s_mov_b32 s{SK+3}, 0x20000",
      f"s_add_u32 s{SV}, s6, s46", f"s_addc_u32 s{SV+1}, s7, 0", f"s_mov_b32 s{SV+2}, 0x80000", f"s_mov_b32 s{SV+3}, 0x20000",
      "s_lshl_b32 s46, s44, 8",
      f"s_add_u32 s{SW}, s40, s46", f"s_addc_u32 s{SW+1}, s41, 0", f"s_sub_u32 s{SW+2}, 5242880, s46", f"s_mov_b32 s{SW+3}, 0x20000",
      "s_mul_i32 s46, s45, 327680", f"s_add_u32 s46, s46, {WS_H1}",
      f"s_add_u32 s{SH}, s42, s46", f"s_addc_u32 s{SH+1}, s43, 0", f"s_mov_b32 s{SH+2}, 327680", f"s_mov_b32 s{SH+3}, 0x20000",
      "s_lshl_b32 s46, s45, 21", f"s_add_u32 s46, s46, {WS_AO}",
      f"s_add_u32 s{SO}, s42, s46", f"s_addc_u32 s{SO+1}, s43, 0", f"s_mov_b32 s{SO+2}, 0x200000", f"s_mov_b32 s{SO+3}, 0x20000")
    def wq_dma(w):
        return [f"buffer_load_dwordx4 v{WV+t}, {sr(SW,4)}, s47 offen offset:{t*1024} nt lds" for t in range(4)]
    def h_load(s, q):
        so = "0" if s < 4 else f"s{sH4 + s//4 - 1}"
        return f"buffer_load_dwordx4 {ar(((s%8)*4+q)*4,4)}, v{HV+q}, {sr(SH,4)}, {so} offen offset:{(s%4)*1024}"
    wstep = {w: 2*w - LW for w in range(10)}
    for w in range(10):
        if wstep[w] < 0:
            p(f"s_add_u32 m0, s{sWOFF}, {w*16384}", f"s_mov_b32 s47, {w*524288}")
            for x in wq_dma(w): p.vmem(x, f"W{w}")
        for s in (2*w, 2*w+1):
            if s < LEAD:
                for q in range(4): p.vmem(h_load(s, q), f"H{s}_{q}")
    p("v_and_b32 v7, 7, v3", "v_lshlrev_b32 v7, 1, v7", "v_xor_b32 v7, v4, v7", "v_lshlrev_b32 v8, 8, v3")
    for ks in range(4):
        p(f"v_xor_b32 v9, {4*ks}, v7", f"v_lshl_add_u32 v{KA+ks}, v9, 4, v8")
    p("v_lshl_add_u32 v7, v4, 2, v5", "v_and_b32 v8, 7, v7", "v_lshlrev_b32 v7, 8, v7")
    p("v_lshl_add_u32 v9, v6, 3, v7", f"v_add_u32 v9, {VBASE}, v9")
    for db in range(8):
        p(f"v_xor_b32 v10, {db}, v8", f"v_lshl_add_u32 v{VA+db}, v10, 5, v9")
    p("v_lshlrev_b32 v8, 1, v8", "v_xor_b32 v8, v6, v8")
    for t in range(4):
        p(f"v_xor_b32 v10, {4*t}, v8", f"v_lshl_add_u32 v{WA+t}, v10, 4, v7",
          f"v_add_u32 v{WA+4+t}, 0x10000, v{WA+t}", f"v_add_u32 v{WA+8+t}, 0x20000, v{WA+t}")
    p("v_lshlrev_b32 v7, 19, v2", "v_lshl_add_u32 v7, v1, 4, v7", "s_lshl_b32 s46, s44, 12", f"v_add_u32 v{OV}, s46, v7")
    for i in range(4): p(f"v_mov_b32 v{ONES+i}, 0x3f803f80")
    p("s_lshr_b32 s60, s2, 3", "s_min_u32 s60, s60, 26", "s_and_b32 s61, s2, 7", "s_mul_i32 s61, s61, 27", "s_add_u32 s60, s60, s61",
      "s_sub_u32 s61, s60, 108", "s_cmp_ge_u32 s60, 108", "s_cselect_b32 s61, s61, s60", "s_cselect_b32 s48, s58, s56", "s_cselect_b32 s49, s59, s57",
      "s_cselect_b32 s57, 7168, 0", "s_mov_b32 s50, 2211840", "s_mov_b32 s51, 0x20000",
      "s_mul_i32 s58, s61, 9363", "s_lshr_b32 s58, s58, 16", "s_mul_i32 s59, s58, 7", "s_sub_u32 s59, s61, s59",
      "s_mul_i32 s58, s58, 286720", "s_lshl_b32 s59, s59, 10", "s_add_u32 s57, s57, s58", "s_add_u32 s57, s57, s59",
      f"s_mul_i32 s58, s{sWAVE}, 71680", "s_add_u32 s57, s57, s58", f"s_add_u32 s57, s57, {WS_GUF}",
      "s_lshl_b32 s56, s61, 5", f"s_mul_i32 s58, s{sWAVE}, {5*110592}", "s_add_u32 s56, s56, s58",
      f"s_mul_i32 s58, s{sWAVE}, 5120", f"s_add_u32 s58, s58, {WS_CS}", "s_mov_b32 s59, 3456", "s_mov_b32 s94, 110592", "s_mov_b32 s95, 14336",
      "s_mov_b32 s52, s42", "s_mov_b32 s53, s43", "s_mov_b32 s54, 0x3000000", "s_mov_b32 s55, 0x20000",
      "s_mov_b32 s96, s90", "s_mov_b32 s97, s91", "s_mov_b32 s98, 5242880", "s_mov_b32 s99, 0x20000",
      "s_lshr_b32 s46, s2, 1", "s_mul_i32 s46, s46, 40960", "s_and_b32 s47, s2, 1", "s_mul_i32 s47, s47, 20", f"s_add_u32 s47, s47, s{sWAVE}",
      "s_lshl_b32 s61, s47, 5", "s_add_u32 s61, s61, s46", "s_lshl_b32 s63, s47, 10", "s_add_u32 s63, s63, s46", f"s_add_u32 s63, s63, {WS_WOF}",
      "s_mul_i32 s46, s2, 6554", "s_lshr_b32 s46, s46, 16", "s_mul_i32 s47, s46, 10", "s_sub_u32 s47, s2, s47", "s_lshl_b32 s47, s47, 2", f"s_add_u32 s47, s47, s{sWAVE}",
      "s_mul_i32 s46, s46, 40960", "s_lshl_b32 s90, s47, 5", "s_add_u32 s90, s90, s46", "s_lshl_b32 s91, s47, 10", "s_add_u32 s91, s91, s46", f"s_add_u32 s91, s91, {WS_WDF}",
      "s_cmp_ge_u32 s2, 180", "s_cselect_b32 s90, 0x4000000, s90", "s_cselect_b32 s91, 0x4000000, s91",
      "s_lshr_b32 s46, s2, 3", "s_lshl_b32 s46, s46, 2", f"s_add_u32 s46, s46, s{sWAVE}", "s_mul_i32 s46, s46, 40960", f"s_add_u32 s101, s46, {WS_WOF}",
      "s_and_b32 s46, s2, 1", f"s_mul_i32 s46, s46, {20480 if k3map[1] == 4 else 0}", "s_add_u32 s101, s101, s46",
      f"s_lshl_b32 s62, s{sWAVE}, 11", "s_add_u32 s62, s62, 0x20000")
    p(f"v_lshrrev_b32 v{JROW}, 1, v1", f"v_and_b32 v{JC16}, 1, v1", f"v_lshlrev_b32 v{JC16}, 4, v{JC16}",
      f"v_mul_u32_u24 v{JVB}, 1280, v{JROW}", f"v_add_u32 v{JVB}, v{JVB}, v{JC16}", f"v_lshlrev_b32 v{JL16}, 4, v1", f"v_lshlrev_b32 v{JTV}, 7, v1",
      "v_lshl_add_u32 v7, v4, 2, v5", "v_lshlrev_b32 v7, 5, v7", "v_lshl_add_u32 v7, v6, 3, v7", f"v_add_u32 v{JTR}, s62, v7")
    def w_reads(s):
        w = s // 2; base = w * 16384 + (s % 2) * 8192; st = base >> 16; base &= 0xffff
        par = s & 1
        return [f"ds_read_b64_tr_b16 {ar(VF+32*par+4*T+2*rd,2)}, v{WA+4*st+T//2} offset:{base + rd*4096 + (T&1)*8}" for T in range(8) for rd in range(2)]
    p(f"s_waitcnt vmcnt({p.vmwait_n(['W0'])})", "s_barrier")
    p(ST(1))
    p(w_reads(0))
    p(f"s_waitcnt vmcnt({p.vmwait_n(['H0_0'])}) lgkmcnt(0)")
    mf = []; tasks = []
    for s in range(20):
        b = 32 * s
        for q in range(4):
            for T in range(8):
                d = vr(ACC + 32*q + 4*T, 4)
                mf.append(f"{MM} {d}, {ar(VF+32*(s&1)+4*T,4)}, {ar(((s%8)*4+q)*4,4)}, {d if s else 0}")
        for q in range(4):
            ns, nq = (s, q+1) if q < 3 else (s+1, 0)
            if ns < 20:
                lg = " lgkm" if q == 3 else ""
                tags = f"H{ns}_{nq}"
                if q == 3 and (ns & 1):
                    wn = (ns + 1) // 2
                    if wn < 10: tags += f",W{wn}"
                    if ns == 17: tags += ",K0"
                    if ns == 19: tags += ",V0"
                    tw = Task(f"WAITVM {tags}{lg}", "s", lo=b+8*q+6, hi=b+8*q+6)
                    tasks.append(tw)
                    tasks.append(Task("s_barrier", "s", lo=b+8*q+7, hi=b+8*q+7))
                else:
                    tasks.append(Task(f"WAITVM {tags}{lg}", "s", lo=b+8*q+7, hi=b+8*q+7))
        rd = w_reads(s+1) if s < 19 else v_reads(0)
        if s == 17: rd = rd + k_reads(0)
        if s == 18: rd = rd + k_reads(1)
        prev = None
        for i, x in enumerate(rd):
            t = Task(x, "ds", lo=b, hi=b+27, after=[prev] if prev else [])
            tasks.append(t); prev = t
        for q in range(4):
            if s + LEAD < 20:
                tasks.append(Task(h_load(s+LEAD, q), "vm", lo=b+8*q+1, hi=b+8*q+1, tag=f"H{s+LEAD}_{q}"))
            if s >= 12:
                for i in range(4):
                    tasks.append(Task(f"v_accvgpr_write_b32 a{((s%8)*4+q)*4+i}, 0", "a", lo=b+8*q+7, hi=b+8*q+60))
        dm = None
        for w in range(10):
            if wstep[w] == s:
                dm = (f"s_add_u32 m0, s{sWOFF}, {w*16384}", f"s_mov_b32 s47, {w*524288}", wq_dma(w), f"W{w}")
        kvs = {14: ("K", 0), 15: ("V", 0), 16: ("K", 1), 17: ("V", 1), 18: ("K", 2), 19: ("V", 2)}
        if s in kvs:
            assert dm is None
            kind, tl = kvs[s]
            dm = (f"s_add_u32 m0, s{sWOFF}, {tl*16384 + (VBASE if kind == 'V' else 0)}", f"s_mov_b32 s47, {tl*16384}",
                  kv_dma(SK if kind == "K" else SV, "s47"), f"{kind}{tl}")
        if dm:
            t1 = Task(dm[0], "s", lo=b+2, hi=b+2); t2 = Task(dm[1], "s", lo=b+3, hi=b+3)
            tasks += [t1, t2]
            for i, x in enumerate(dm[2]):
                tasks.append(Task(x, "vm", lo=b+8*i+5, hi=b+8*i+5, tag=dm[3]))
    b = len(mf)
    for q in range(4):
        for t in range(4):
            for j in range(4):
                a = ACC + 32*q + 8*t + 2*j
                tasks.append(Task(f"v_cvt_pk_bf16_f32 v{Q0+16*q+4*t+j}, v{a}, v{a+1}", "a", lo=b-32+8*q+7+4, hi=b+8*q-2 if q else b-3))
    for q in range(4):
        mf += qk_mfmas(0, q, first=True)
    tasks.append(Task("s_waitcnt lgkmcnt(0)", "s", lo=b-1, hi=b-1))
    lastcvt = [t for t in tasks if t.text.startswith("v_cvt_pk_bf16_f32")]
    for i in range(16):
        tasks.append(Task(f"v_mov_b32 v{L(1,0)+i}, 0", "a", lo=b, after=lastcvt))
    for i in range(4):
        tasks.append(Task(f"v_mov_b32 v{JD+i}, 0", "a", lo=b, after=lastcvt))
    chain_end = {}
    for q in range(4):
        t0 = X0 + 2*q; t1 = t0 + 1
        seq = [f"v_max3_f32 v{t0}, {S(q,0)}, {S(q,1)}, {S(q,2)}", f"v_max3_f32 v{t0}, v{t0}, {S(q,3)}, {S(q,4)}",
               f"v_max3_f32 v{t0}, v{t0}, {S(q,5)}, {S(q,6)}", f"v_max_f32 v{t0}, v{t0}, {S(q,7)}"] + xmax(t0, t1)
        prev = None
        for x in seq:
            t = Task(x, "a", lo=b+8*q+7+4, after=([prev] if prev else []) + lastcvt); tasks.append(t); prev = t
        subs = []
        for i in range(8):
            t = Task(f"v_sub_f32 {S(q,i)}, {S(q,i)}, v{t0}", "a", after=[prev]); tasks.append(t); subs.append(t)
        for i in range(4):
            tasks.append(Task(f"v_sub_f32 v{NM(q)+i}, 0, v{t0}", "a", after=[prev]))
        chain_end[q] = subs
    prevc = []
    for q in range(3):
        es = []
        for i in range(8):
            t = Task(exp_i(q, i), "e", after=[chain_end[q][i]] + prevc); tasks.append(t); es.append(t)
        prevc = []
        for i in range(4):
            t = Task(cvt_i(q, i), "a", after=[es[2*i], es[2*i+1]]); tasks.append(t); prevc.append(t)
    start = len(p.lines)
    emit_sched(p, schedule(mf, tasks))
    p(ones_mfma(0, 0), ones_mfma(0, 1))
    p(ST(2))
    p(f"s_mov_b32 s{sTILE}, {3*16384}", f"s_mov_b32 s{sCNT}, 0")
    p(f"s_waitcnt vmcnt({p.vmwait_n(['K1','V1'])}) lgkmcnt(0)", "s_barrier")
    p(ST(3))
    if stamp: p("s_waitcnt lgkmcnt(0)")
    p.lines = fix_hazards(p.lines)
    pro = list(p.lines)
    sites = []
    def unit(n, q):
        oq = (q + 2) % 4; opar = (n + 1) & 1 if q >= 2 else n & 1
        sq = (q + 3) % 4
        m = [ones_mfma(opar, oq)] + qk_mfmas((n + 1) & 1, q) + pv_mfmas(n & 1, q)
        sal = [[] for _ in range(17)]; lo = [[] for _ in range(17)]; va = [[] for _ in range(17)]
        site = len(sites); sites.append((opar, oq))
        cmp_ = f"v_cmp_lt_f32 vcc, s{sTHR}, v{L(opar,oq)}"
        br = [f"s_cbranch_vccnz {name}_rs{site}", f"{name}_rb{site}:"]
        if q < 3:
            rd = (v_reads(n+1) + k_reads(n+2))[8*q:8*q+8]
            eg = [0, 1, 4, 5, 8, 9, 13, 14]; dg = [2, 3, 6, 7, 10, 12, 15, 16]
            for i, g in enumerate(eg): va[g].append(exp_i(sq, i))
            for i, g in enumerate(dg): lo[g].append(rd[i])
            va[2].append(cvt_i(sq, 0)); va[6].append(cvt_i(sq, 1)); va[10].append(cvt_i(sq, 2)); va[15].append(cvt_i(sq, 3))
            va[7].append(cmp_); sal[11] += br
        else:
            tile_st = ((n // 2) + 3) % 4
            isv = n & 1
            dm = kv_dma(SV if isv else SK, f"s{sTILE}")
            sal[0].append(f"s_add_u32 m0, s{sWOFF}, {tile_st*16384 + (VBASE if isv else 0)}")
            eg = [0, 2, 4, 6, 9, 10, 11, 12]
            for i, g in enumerate(eg): va[g].append(exp_i(sq, i))
            for i, g in enumerate([1, 3, 5, 7]): lo[g].append(dm[i])
            va[8] += [cmp_, cvt_i(sq, 0)]
            va[13] += [cvt_i(sq, 1)]; sal[13] += br
            va[14] += [cvt_i(sq, 2), cvt_i(sq, 3)]
            if isv:
                sal[9].append(f"s_add_u32 s{sTILE}, s{sTILE}, 16384")
                sal[14].append(f"WAIT {n}"); sal[15].append("s_barrier")
            else:
                sal[14].append("s_waitcnt lgkmcnt(0)")
            if n == 6:
                sal[10].append(f"s_add_u32 s{sCNT}, s{sCNT}, 1"); sal[11].append(f"s_cmp_eq_u32 s{sCNT}, 8")
            if side_on:
                if n == 0:
                    sal[12].append("s_mov_b32 m0, s62")
                    lo[15].append(f"buffer_load_dwordx4 v{JVA}, s[48:51], s56 offen nt lds ;J")
                    lo[16].append(f"buffer_load_dwordx4 {vr(JCS,4)}, v{JL16}, s[52:55], s58 offen ;J")
                if n == 1:
                    sal[12].append("s_add_u32 m0, s62, 1024")
                    lo[15].append(f"buffer_load_dwordx4 v{JVB}, s[96:99], s61 offen nt lds ;J")
                if n in (4, 5):
                    f = JFA if n == 4 else JFB
                    lo[15].append(f"ds_read_b64_tr_b16 {vr(f,2)}, v{JTR} offset:{(n-4)*1024}")
                    lo[16].append(f"ds_read_b64_tr_b16 {vr(f+2,2)}, v{JTR} offset:{(n-4)*1024 + 512}")
                if n == 6:
                    lo[15].append(f"buffer_store_dwordx4 {vr(JFA,4)}, v{JL16}, s[52:55], s57 offen {stflag}")
                    lo[16].append(f"buffer_store_dwordx4 {vr(JFB,4)}, v{JL16}, s[52:55], s63 offen {stflag}")
                    va[16].append(f"{MM} {vr(JD,4)}, {vr(JFA,4)}, {vr(JCS,4)}, {vr(JD,4)}")
        if side_on and n == 0 and q == 0:
            va[3].append(f"v_mad_u32_u24 v{JVA}, v{JROW}, s59, v{JC16}")
        if side_on and n == 7 and q == 0:
            upd = ["s_add_u32 s56, s56, s94", "s_add_u32 s57, s57, s95", "s_add_u32 s58, s58, 1024", "s_add_u32 s61, s61, 128", "s_add_u32 s63, s63, 4096"]
            for i, x in enumerate(upd): sal[i].append(x)
        if side_on and n == 7 and q == 1:
            upd = [f"s_cmp_eq_u32 s{sCNT}, 5", "s_cselect_b32 s48, s92, s48", "s_cselect_b32 s49, s93, s49", "s_cselect_b32 s56, s90, s56", "s_cselect_b32 s57, s91, s57",
                   "s_cselect_b32 s58, 0x4000000, s58", "s_cselect_b32 s59, 1280, s59", f"s_cselect_b32 s94, {18*40960}, s94", f"s_cselect_b32 s95, {18*40960}, s95",
                   "s_cselect_b32 s61, 0x4000000, s61", "s_cselect_b32 s63, 0x4000000, s63"]
            for i, x in enumerate(upd): sal[i].append(x)
        out = []
        for g in range(17):
            out.append(m[g]); out += sal[g] + lo[g] + va[g]
        return out
    loop = [".p2align 6", f"{name}_loop:"]
    for n in range(8):
        loop.append(f";STEP {n}")
        for q in range(4):
            loop += unit(n, q)
        if n == 6: loop.append(f"s_cbranch_scc1 {name}_tail")
    loop.append(f"s_branch {name}_loop")
    stepof = []; cur = 0
    res = []
    vmseq = []
    for rep in range(2):
        cur = 0
        for x in loop:
            if x.startswith(";STEP"): cur = int(x.split()[1])
            elif x.startswith("buffer_"): vmseq.append((rep*8 + cur, "store" in x or ";J" in x or "load_dword " in x))
            elif x.startswith("WAIT") and rep == 1:
                lim = 8 + cur - 2
                last = max(i for i, (st_, isst) in enumerate(vmseq) if st_ <= lim and not isst)
                res.append(len(vmseq) - 1 - last)
    it = iter(res)
    loop = [f"s_waitcnt vmcnt({next(it)}) lgkmcnt(0)" if x.startswith("WAIT") else x.replace(" ;J", "") for x in loop if not x.startswith(";STEP")]
    print("barrier vmcnt", res)
    cut = loop.index(f"s_cbranch_scc1 {name}_tail")
    tl = []
    s2 = len(sites); sites.append((1, 2)); s3 = len(sites); sites.append((1, 3))
    pv = [pv_mfmas(1, q) for q in range(4)]
    tl.append(ones_mfma(1, 2))
    offs = [] if not l2pf else ([0, 8192, 12288] if k3map[1] == 4 else [0, 8192, 16384, 24576, 32768][:l2pf])
    for i in range(8):
        tl += [pv[0][i]]
        if i < len(offs): tl += [f"s_add_u32 s100, s101, {offs[i]}", f"buffer_load_dword v{JTD}, v{JTV}, s[52:55], s100 offen"]
        tl += [exp_i(3, i)]
    tl += [pv[1][0], cvt_i(3, 0), cvt_i(3, 1), pv[1][1], cvt_i(3, 2), cvt_i(3, 3), pv[1][2], f"v_cmp_lt_f32 vcc, s{sTHR}, v{L(1,2)}",
           ones_mfma(1, 3), pv[1][3], pv[1][4], pv[1][5], f"s_cbranch_vccnz {name}_rs{s2}", f"{name}_rb{s2}:", pv[1][6], pv[1][7]]
    def norm(q):
        r = X0 + 8
        out = [f"v_rcp_f32 v{r}, v{L(1,q)}"]
        for tt in range(4):
            bb = S0 + 8*tt
            d = X0 + 4*(tt & 1) if False else S0 + 8*tt
            o = []
            for i in range(8): o.append(f"v_accvgpr_read_b32 v{Q0+16*q+ (8*(tt&1)) + i}, a{O0+32*q+8*tt+i}")
            base = Q0 + 16*q + 8*(tt & 1)
            for i in range(8): o.append(f"v_mul_f32 v{base+i}, v{base+i}, v{r}")
            dst = T0 + 4*(tt & 1)
            for i in range(4): o.append(f"v_cvt_pk_bf16_f32 v{dst+i}, v{base+2*i}, v{base+2*i+1}")
            o.append(f"buffer_store_dwordx4 {vr(dst,4)}, v{OV}, {sr(SO,4)}, s46 offen offset:{tt*1024}")
            out += o
        return [f"s_mov_b32 s46, {q*131072}"] + out
    n0 = norm(0)
    k = 0
    fill = n0
    seq = [pv[2][0], f"v_cmp_lt_f32 vcc, s{sTHR}, v{L(1,3)}"]
    for i in range(1, 8):
        seq += [pv[2][i]] + fill[k:k+2]; k += 2
    seq += [f"s_cbranch_vccnz {name}_rs{s3}", f"{name}_rb{s3}:"]
    for i in range(8):
        seq += [pv[3][i]] + fill[k:k+2]; k += 2
    seq += fill[k:]
    tl += seq
    U = KA
    tl += ["v_lshlrev_b32 v7, 4, v0", "v_add_u32 v7, 0x25000, v7", f"ds_write_b128 v7, {vr(JD,4)}", "s_waitcnt lgkmcnt(0)", "s_barrier"]
    tl += norm(1)
    tl += [f"v_add_u32 v7, 0x25000, v{JL16}"] + [f"ds_read_b128 {vr(U+4*w,4)}, v7 offset:{w*1024}" for w in range(4)]
    tl += norm(2)
    tl += ["s_waitcnt lgkmcnt(0)"]
    for i in (0, 2):
        tl += [f"v_pk_add_f32 {vr(U+i,2)}, {vr(U+i,2)}, {vr(U+4+i,2)}", f"v_pk_add_f32 {vr(U+8+i,2)}, {vr(U+8+i,2)}, {vr(U+12+i,2)}"]
    for i in (0, 2):
        tl += [f"v_pk_add_f32 {vr(U+i,2)}, {vr(U+i,2)}, {vr(U+8+i,2)}"]
    tl += ["v_mul_u32_u24 v7, 13824, v3", "v_lshl_add_u32 v7, v4, 4, v7", "v_and_b32 v8, 0xce, v0", "v_cmp_eq_u32 vcc, 0, v8", "v_mov_b32 v8, 0x4000000",
           "v_cndmask_b32 v7, v8, v7, vcc", "s_lshl_b32 s61, s60, 6", f"s_add_u32 s61, s61, {WS_UW}",
           f"buffer_store_dwordx4 {vr(U,4)}, v7, s[52:55], s61 offen"]
    tl += norm(3)
    pre_ctx = [x for x in loop[:cut] if not (x.endswith(":") or x.startswith("."))][-24:]
    tl = fix_hazards(pre_ctx + tl)[len(pre_ctx):]
    fin = []
    if stamp:
        fin = ST(5) + ["s_waitcnt vmcnt(0)"] + ST(6) + ["s_memrealtime s[82:83]", "s_waitcnt lgkmcnt(0)"] + stamp_out(42, 7, 1)
    tail = [f"{name}_tail:"] + ST(4) + (["s_waitcnt lgkmcnt(0)"] if stamp else []) + tl + fin + [f"{name}_end:", "s_endpgm"]
    rare = []
    for i, (par, q) in enumerate(sites):
        rare += [f"{name}_rs{i}:", f"s_call_b64 {sr(sRET,2)}, {name}_rare{par}{q}", f"s_branch {name}_rb{i}"]
    for par in range(2):
        for q in range(4):
            t0, t1, sc = X0 + 10, X0 + 11, X0 + 12
            r = ["s_nop 15", f"v_max3_f32 v{t0}, {S(q,0)}, {S(q,1)}, {S(q,2)}", f"v_max3_f32 v{t0}, v{t0}, {S(q,3)}, {S(q,4)}",
                 f"v_max3_f32 v{t0}, v{t0}, {S(q,5)}, {S(q,6)}", f"v_max3_f32 v{t0}, v{t0}, {S(q,7)}, 0"] + xmax(t0, t1)
            r += [f"v_exp_f32_e64 v{sc}, -v{t0}"]
            r += [f"v_sub_f32 {S(q,i)}, {S(q,i)}, v{t0}" for i in range(8)]
            r += [f"v_sub_f32 v{NM(q)+i}, v{NM(q)+i}, v{t0}" for i in range(4)]
            r += [f"v_mul_f32 v{L(1-par,q)+i}, v{L(1-par,q)+i}, v{sc}" for i in range(4)]
            for i in range(32):
                r += [f"v_accvgpr_read_b32 v{t1}, a{O0+32*q+i}", f"v_mul_f32 v{t1}, v{t1}, v{sc}", f"v_accvgpr_write_b32 a{O0+32*q+i}, v{t1}"]
            for i in range(4):
                r += [f"v_exp_f32 v{X0+13}, {S(q,2*i)}", f"v_exp_f32 v{X0+14}, {S(q,2*i+1)}", f"v_cvt_pk_bf16_f32 v{P(q)+i}, v{X0+13}, v{X0+14}"]
            r += [ones_mfma(par, q), "s_nop 15", f"s_setpc_b64 {sr(sRET,2)}"]
            rare += [f"{name}_rare{par}{q}:"] + fix_hazards(r)
    bad = check_linear(pro + loop + loop, "k2 main") + check_linear(loop[:cut] + tail, "k2 tail")
    assert bad == 0
    p.lines = pro + loop + tail + rare
    return p.text(), dict(vgpr=512, acc=256, sgpr=102, lds=163840, grid=256, block=256)
```

```python
from asmlib import *
from sched import *
from layout import *
from k1 import srd, f32
from k2 import emit_sched, MM

def gen_skinny(name, which, D=4, stamp=False, xmap=(8, 4), pfA=0, pfW=0, nextpf=None):
    k3 = which == 3
    NS = 32 if k3 else 14
    KST = 128 if k3 else 54
    WBASE = WS_WOF if k3 else WS_WDF
    ABASE = WS_AO if k3 else WS_HH
    R, C = xmap
    p = Prog()
    SA, SW, SX, SM = 8, 12, 16, 20
    ACC = 0
    BF = 80
    WF = 108
    XR = 16
    G0 = 28; C0 = 48
    T = 68; U0 = 88
    R0 = 108
    AV, WV = 240, 244
    def ST(i): return [f"s_memtime s[{64+2*i}:{65+2*i}]"] if stamp else []
    p.label(name)
    if stamp: p("s_memrealtime s[80:81]")
    p(ST(0))
    p("s_cmp_ge_u32 s2, 256", f"s_cbranch_scc1 {name}_end",
      "s_load_dwordx2 s[6:7], s[0:1], 104", f"s_load_dwordx2 s[32:33], s[0:1], {0 if k3 else 88}")
    p("v_and_b32 v1, 63, v0", "v_lshrrev_b32 v2, 6, v0", "v_and_b32 v3, 15, v0", "v_bfe_u32 v4, v0, 4, 2",
      "v_readfirstlane_b32 s34, v2")
    if C == 8:
        p("s_bfe_u32 s35, s2, 0x30003", "s_and_b32 s36, s2, 7", "s_lshl_b32 s36, s36, 2", "s_lshr_b32 s59, s2, 6", "s_add_u32 s36, s36, s59", "s_mov_b32 s37, s35")
    else:
        p("s_bfe_u32 s37, s2, 0x20003", "s_and_b32 s35, s2, 1", "s_lshl_b32 s35, s35, 2", "s_add_u32 s35, s35, s37",
          "s_bfe_u32 s36, s2, 0x20001", "s_lshl_b32 s36, s36, 3", "s_lshr_b32 s59, s2, 5", "s_add_u32 s36, s36, s59")
    p(f"v_mul_u32_u24 v7, {NS*1024}, v2", "v_lshl_add_u32 v7, v1, 4, v7")
    for i in range(4):
        p(f"v_add_u32 v8, {i}, v2", "v_and_b32 v8, 3, v8", f"v_mul_u32_u24 v8, {KST*1024}, v8", f"v_add_u32 v{AV+i}, v8, v7")
    p(f"v_mul_u32_u24 v7, {NS*40960}, v2", f"v_lshl_add_u32 v{WV}, v1, 4, v7", f"v_add_u32 v{WV+1}, 4096, v{WV}")
    for j in range(8): p(f"s_mov_b32 s{42+j}, {4096*j}")
    p("s_waitcnt lgkmcnt(0)")
    p(f"s_mul_i32 s39, s36, {4*KST*1024}", f"s_add_u32 s40, s39, {ABASE}",
      f"s_add_u32 s{SA}, s6, s40", f"s_addc_u32 s{SA+1}, s7, 0", f"s_sub_u32 s{SA+2}, {128*KST*1024}, s39", f"s_mov_b32 s{SA+3}, 0x20000",
      "s_mul_i32 s39, s35, 5120", f"s_add_u32 s40, s39, {WBASE}",
      f"s_add_u32 s{SW}, s6, s40", f"s_addc_u32 s{SW+1}, s7, 0", f"s_sub_u32 s{SW+2}, {KST*40960}, s39", f"s_mov_b32 s{SW+3}, 0x20000")
    if pfA:
        if C == 4: p(f"s_mul_i32 s39, s37, {KST*1024}")
        else: p("s_lshr_b32 s39, s37, 1", f"s_mul_i32 s39, s39, {KST*1024}", "s_and_b32 s40, s37, 1", "s_lshl_b32 s40, s40, 9", "s_add_u32 s39, s39, s40")
        p(f"s_mul_i32 s40, s34, {NS*1024}", "s_add_u32 s39, s39, s40", f"s_add_u32 s24, s{SA}, s39", f"s_addc_u32 s25, s{SA+1}, 0")
    if pfW:
        p(f"s_mul_i32 s39, s59, {5120//R}", f"s_mul_i32 s40, s34, {NS*40960}", "s_add_u32 s39, s39, s40", f"s_add_u32 s26, s{SW}, s39", f"s_addc_u32 s27, s{SW+1}, 0",
          f"s_add_u32 s28, s26, {16*40960}", "s_addc_u32 s29, s27, 0")
    def pf(s):
        out = []
        if s >= NS or (not k3 and s >= 12): return out
        if pfA: out += [f"s_load_dword s60, s[24:25], {s*1024 + l*128}" for l in range(32 // C)]
        if pfW: out += [f"s_load_dword s61, {'s[26:27]' if s < 16 else 's[28:29]'}, {(s%16)*40960 + l*128}" for l in range(40 // R)]
        return out
    PL = max(pfA, pfW)
    def wload(s, nb):
        return f"buffer_load_dwordx4 {vr(WF+20*(s%D)+4*nb,4)}, v{WV + nb//4}, {sr(SW,4)}, s{40 + (s&1)} offen offset:{(nb%4)*1024}"
    def wset(s): return f"s_mov_b32 s{40 + (s&1)}, {s*40960}"
    def aload(s, i):
        return f"buffer_load_dwordx4 {ar(BF+16*(s%D)+4*i,4)}, v{AV+i}, {sr(SA,4)}, s{42 + (s//4)} offen offset:{(s%4)*1024}"
    for s in range(D - 1):
        p(wset(s))
        for nb in range(5): p.vmem(wload(s, nb), f"S{s}")
        for i in range(4): p.vmem(aload(s, i), f"S{s}")
        if s == 0:
            for s2 in range(D - 1, D - 1 + PL): p(pf(s2))
    srd(p, SM, 6, 7, 0x800000)
    p("v_lshlrev_b32 v7, 4, v4", "s_mul_i32 s50, s35, 320")
    p(f"s_add_u32 s51, s50, {WS_MOD + (2 if k3 else 5)*2560}", f"s_add_u32 s52, s50, {WS_MOD + 4*2560}")
    p("v_lshl_add_u32 v8, v2, 4, v3", "v_mul_u32_u24 v8, 1280, v8", "v_lshl_add_u32 v11, v4, 3, v8",
      "s_mul_i32 s53, s36, 81920", "s_mul_i32 s39, s35, 160", "s_add_u32 s53, s53, s39")
    srd(p, SX, 32, 33, 2621440)
    p("v_lshlrev_b32 v12, 3, v0", "v_add_u32 v13, 4096, v12", "v_add_u32 v14, 8192, v12", "s_lshl_b32 s54, s36, 3", "s_add_u32 s54, s54, s35", "s_mul_i32 s54, s54, 10240", f"s_add_u32 s54, s54, {WS_X2}")
    extra = []
    for nb in range(5):
        extra.append(f"buffer_load_dwordx4 {vr(G0+4*nb,4)}, v7, {sr(SM,4)}, s51 offen offset:{64*nb}")
        if k3:
            extra.append(f"buffer_load_dwordx4 {vr(C0+4*nb,4)}, v7, {sr(SM,4)}, s52 offen offset:{64*nb}")
            extra.append(f"buffer_load_dwordx2 {vr(XR+2*nb,2)}, v11, {sr(SX,4)}, s53 offen offset:{32*nb}")
        else:
            extra.append(f"buffer_load_dwordx2 {vr(XR+2*nb,2)}, v{12 + nb//2}, {sr(SM,4)}, s54 offen offset:{2048*(nb%2)}")
    nxt = []
    if nextpf:
        nxt = nextpf(p)
    p(f"s_waitcnt vmcnt({p.vmwait_n(['S0'])})")
    p(ST(1))
    mf = []; tasks = []
    for s in range(NS):
        b = 20 * s
        for i in range(4):
            for nb in range(5):
                d = ar(ACC + 20*i + 4*nb, 4)
                mf.append(f"{MM} {d}, {vr(WF+20*(s%D)+4*nb,4)}, {ar(BF+16*(s%D)+4*i,4)}, {d if s else 0}")
        n = s + D - 1
        vm = []
        if n < NS:
            tasks.append(Task(wset(n), "s", lo=b, hi=b))
            vm = [(wload(n, nb), f"S{n}") for nb in range(5)] + [(aload(n, i), f"S{n}") for i in range(4)]
        else:
            k = (len(extra) + (NS - s) - 1) // (NS - s)
            vm = [(x, "E") for x in extra[:k]]; extra = extra[k:]
        for i, (x, tg) in enumerate(vm):
            tasks.append(Task(x, "vm", lo=b+1+2*i, hi=b+1+2*i, tag=tg))
        sl = pf(s + D - 1 + PL)
        if not sl and nxt:
            sl = nxt[:8]; nxt = nxt[8:]
        for i, x in enumerate(sl):
            tasks.append(Task(x, "s", lo=b+1+i, hi=b+18))
        if s + 1 < NS:
            tasks.append(Task(f"WAITVM S{s+1}", "s", lo=b+19, hi=b+19))
    assert not nxt and not extra
    emit_sched(p, schedule(mf, tasks))
    p(ST(2))
    p("v_lshlrev_b32 v8, 4, v1")
    for i in range(1, 4):
        p(f"s_add_u32 s55, s34, {i}", "s_and_b32 s55, s55, 3", "s_mul_i32 s55, s55, 15360", f"s_add_u32 s55, s55, {(i-1)*5120}", f"v_add_u32 v9, s55, v8")
        for nb in range(5):
            p(f"ds_write_b128 v9, {ar(ACC+20*i+4*nb,4)} offset:{nb*1024}")
    for j in range(20): p(f"v_accvgpr_read_b32 v{T+j}, a{ACC+j}")
    p("s_mul_i32 s55, s34, 15360", "v_add_u32 v9, s55, v8")
    p("s_waitcnt lgkmcnt(0)", "s_barrier")
    for j in range(15): p(f"ds_read_b128 {vr(R0+4*j,4)}, v9 offset:{j*1024}")
    p("s_waitcnt vmcnt(0)")
    for j in range(10):
        p(f"v_lshlrev_b32 v{U0+2*j}, 16, v{XR+j}", f"v_and_b32 v{U0+2*j+1}, 0xffff0000, v{XR+j}")
    for i in range(3):
        p(f"s_waitcnt lgkmcnt({10 - 5*i})")
        for j in range(0, 20, 2): p(f"v_pk_add_f32 {vr(T+j,2)}, {vr(T+j,2)}, {vr(R0+20*i+j,2)}")
    for j in range(0, 20, 2): p(f"v_pk_fma_f32 {vr(T+j,2)}, {vr(T+j,2)}, {vr(G0+j,2)}, {vr(U0+j,2)}")
    for j in range(10): p(f"v_cvt_pk_bf16_f32 v{XR+j}, v{T+2*j}, v{T+2*j+1}")
    if not k3:
        for nb in range(5):
            p(f"buffer_store_dwordx2 {vr(XR+2*nb,2)}, v11, {sr(SX,4)}, s53 offen offset:{32*nb}")
    else:
        for j in range(10):
            p(f"v_lshlrev_b32 v{T+2*j}, 16, v{XR+j}", f"v_and_b32 v{T+2*j+1}, 0xffff0000, v{XR+j}")
        for j in range(0, 20, 2): p(f"v_pk_mul_f32 {vr(T+j,2)}, {vr(T+j,2)}, {vr(C0+j,2)}")
        for j in range(10): p(f"v_cvt_pk_bf16_f32 v{R0+j}, v{T+2*j}, v{T+2*j+1}")
        p("s_lshl_b32 s55, s36, 2", "s_add_u32 s55, s55, s34", "s_mul_i32 s55, s55, 20480", f"s_add_u32 s55, s55, {WS_Y}", "s_mul_i32 s56, s35, 5")
        for nb in range(5):
            p(f"s_add_u32 s57, s56, {nb}", "s_lshr_b32 s58, s57, 1", "s_lshl_b32 s58, s58, 10", "s_and_b32 s57, s57, 1", "s_lshl_b32 s57, s57, 3",
              "s_add_u32 s57, s57, s58", "s_add_u32 s57, s57, s55",
              f"buffer_store_dwordx2 {vr(R0+2*nb,2)}, v8, {sr(SM,4)}, s57 offen")
        p("v_mov_b32 v5, 0x3f803f80")
        for j in range(10):
            p(f"v_dot2_f32_bf16 v6, v{XR+j}, v5, {'v6' if j else 0}", f"v_dot2_f32_bf16 v15, v{XR+j}, v{XR+j}, {'v15' if j else 0}")
        for nb in range(5):
            p(f"buffer_store_dwordx2 {vr(XR+2*nb,2)}, v{12 + nb//2}, {sr(SM,4)}, s54 offen offset:{2048*(nb%2)}")
        p("v_permlane32_swap_b32 v6, v15", "v_add_f32 v6, v6, v15", "v_mov_b32 v15, v6", "v_permlane16_swap_b32 v6, v15", "v_add_f32 v6, v6, v15")
        p("v_lshl_add_u32 v9, v2, 4, v3", "v_lshlrev_b32 v9, 6, v9", "v_lshrrev_b32 v10, 5, v1", "v_lshl_add_u32 v9, v10, 2, v9",
          "s_lshl_b32 s55, s36, 12", "s_lshl_b32 s56, s35, 3", "s_add_u32 s55, s55, s56", f"s_add_u32 s55, s55, {WS_STATS}",
          f"buffer_store_dword v6, v9, {sr(SM,4)}, s55 offen")
    if stamp:
        p(ST(3), "s_waitcnt vmcnt(0)", ST(4), "s_memrealtime s[82:83]", "s_waitcnt lgkmcnt(0)", stamp_out(6, 5, 2 if k3 else 4))
    p.label(f"{name}_end")
    p("s_endpgm")
    p.lines = fix_hazards(p.lines)
    return p.text(), dict(vgpr=512, acc=256, sgpr=96, lds=61440, grid=256, block=256)
```

```python
from asmlib import *
from sched import *
from layout import *
from k1 import srd, f32
from k2 import emit_sched, MM

def gen_k4(name, stamp=False, LEAD=3, NPRE=2, xmap=(8, 4)):
    p = Prog()
    SY, SW, SM, SH = 8, 12, 16, 20
    ACC = 0; BF = 112; BD = 16
    WF = 16; UW = 128; STT = 240
    DV, RA, YV = 248, 10, 13
    SLOT = 28672; R = 5
    def ST(i): return [f"s_memtime s[{64+2*i}:{65+2*i}]"] if stamp else []
    p.label(name)
    if stamp: p("s_memrealtime s[80:81]")
    p(ST(0))
    p("s_cmp_ge_u32 s2, 256", f"s_cbranch_scc1 {name}_end",
      "s_load_dwordx2 s[6:7], s[0:1], 104")
    p("v_and_b32 v1, 63, v0", "v_lshrrev_b32 v2, 6, v0", "v_and_b32 v3, 15, v0", "v_bfe_u32 v4, v0, 4, 2", "v_bfe_u32 v5, v0, 2, 2", "v_and_b32 v6, 3, v0",
      "v_readfirstlane_b32 s34, v2")
    if xmap == (2, 16):
        p("s_bfe_u32 s35, s2, 0x40003", "s_and_b32 s36, s2, 7", "s_lshl_b32 s36, s36, 1", "s_lshr_b32 s37, s2, 7", "s_add_u32 s36, s36, s37")
    else:
        p("s_bfe_u32 s37, s2, 0x20003", "s_and_b32 s35, s2, 3", "s_lshl_b32 s35, s35, 2", "s_add_u32 s35, s35, s37",
          "s_bfe_u32 s36, s2, 0x10002", "s_lshl_b32 s36, s36, 3", "s_lshr_b32 s37, s2, 5", "s_add_u32 s36, s36, s37")
    p("v_mul_u32_u24 v7, 7168, v2", f"v_lshl_add_u32 v{DV}, v1, 4, v7", f"v_add_u32 v{DV+1}, 4096, v{DV}")
    p("v_mul_u32_u24 v7, 40960, v2", f"v_lshl_add_u32 v{YV}, v1, 4, v7", f"v_add_u32 v{YV+1}, 20480, v{YV}")
    p("s_mul_i32 s38, s34, 7168")
    for j in range(5): p(f"s_mov_b32 s{42+j}, {4096*j}")
    p("s_waitcnt lgkmcnt(0)")
    p("s_mul_i32 s39, s35, 286720", f"s_add_u32 s39, s39, {WS_GUF}",
      f"s_add_u32 s{SW}, s6, s39", f"s_addc_u32 s{SW+1}, s7, 0", f"s_mov_b32 s{SW+2}, 286720", f"s_mov_b32 s{SW+3}, 0x20000",
      "s_mul_i32 s39, s36, 163840", f"s_add_u32 s39, s39, {WS_Y}",
      f"s_add_u32 s{SY}, s6, s39", f"s_addc_u32 s{SY+1}, s7, 0", f"s_mov_b32 s{SY+2}, 163840", f"s_mov_b32 s{SY+3}, 0x20000")
    def dma(st):
        out = []
        for t in range(7):
            if t % 4 == 0: out.append(("s", f"s_add_u32 m0, s38, {(st % R)*SLOT + t*1024}"))
            if t == 0: out.append(("s", f"s_mov_b32 s41, {st*SLOT}"))
            out.append(("vm", f"buffer_load_dwordx4 v{DV+t//4}, {sr(SW,4)}, s41 offen offset:{(t%4)*1024} lds"))
        return out
    def yload(ks, tb):
        return f"buffer_load_dwordx4 {ar(BF+8*(ks%BD)+4*tb,4)}, v{YV+tb}, {sr(SY,4)}, s{42+ks//4} offen offset:{(ks%4)*1024}"
    for st in range(NPRE):
        for k, x in dma(st):
            if k == "s": p(x)
            else: p.vmem(x, f"W{st}")
        for ks in (2*st, 2*st+1):
            if ks < LEAD:
                for tb in range(2): p.vmem(yload(ks, tb), f"Y{ks}")
    srd(p, SM, 6, 7, 0x800000)
    p("s_mul_i32 s39, s36, 442368", f"s_add_u32 s39, s39, {WS_HH}",
      f"s_add_u32 s{SH}, s6, s39", f"s_addc_u32 s{SH+1}, s7, 0", f"s_mov_b32 s{SH+2}, 442368", f"s_mov_b32 s{SH+3}, 0x20000")
    p(f"v_lshlrev_b32 v{RA}, 4, v1",
      f"v_add_u32 v{RA+1}, {2*SLOT}, v{RA}", f"v_add_u32 v{RA+2}, {4*SLOT}, v{RA}")
    p("v_lshlrev_b32 v7, 4, v4",
      "v_lshl_add_u32 v8, v2, 5, v3", "v_lshlrev_b32 v8, 6, v8", "v_add_u32 v8, v8, v7",
      "s_mul_i32 s50, s35, 448", f"s_add_u32 s50, s50, {WS_UW}", "s_add_u32 s51, s50, 6912", "s_add_u32 s52, s50, 13824", "s_add_u32 s53, s51, 13824",
      "s_lshl_b32 s54, s36, 13", f"s_add_u32 s54, s54, {WS_STATS}")
    def wreads(ks):
        sl = (ks // 2) % R
        base = (sl % 2) * SLOT + (ks % 2) * 14336
        return [f"ds_read_b128 {vr(WF+56*(ks&1)+4*f,4)}, v{RA+sl//2} offset:{base + f*1024}" for f in range(14)]
    p(f"s_waitcnt vmcnt({p.vmwait_n(['W0'])})", "s_barrier")
    p(ST(1))
    p(wreads(0))
    p(f"s_waitcnt vmcnt({p.vmwait_n(['Y0'])}) lgkmcnt(0)")
    mf = []; tasks = []
    extra = []
    for m in range(2):
        for j in range(7):
            extra.append(f"buffer_load_dwordx4 {vr(UW+56*m+8*j,4)}, v7, {sr(SM,4)}, s{50+m} offen offset:{64*j}")
            extra.append(f"buffer_load_dwordx4 {vr(UW+56*m+8*j+4,4)}, v7, {sr(SM,4)}, s{52+m} offen offset:{64*j}")
    extra += [f"buffer_load_dwordx4 {vr(STT+4*tb,4)}, v8, {sr(SM,4)}, s54 offen offset:{1024*tb}" for tb in range(2)]
    for ks in range(20):
        b = 28 * ks
        for tb in range(2):
            for m in range(2):
                for j in range(7):
                    d = ar(ACC + 56*tb + 28*m + 4*j, 4)
                    mf.append(f"{MM} {d}, {vr(WF+56*(ks&1)+28*m+4*j,4)}, {ar(BF+8*(ks%BD)+4*tb,4)}, {d if ks else 0}")
        if ks < 19:
            for i, x in enumerate(wreads(ks + 1)):
                g = b + i + i // 2
                tasks.append(Task(x, "ds", lo=g, hi=g))
            tags = f"Y{ks+1}"
            if (ks + 1) & 1 and (ks + 2) // 2 < 10:
                tags += f",W{(ks+2)//2}"
                tasks.append(Task(f"WAITVM {tags} lgkm", "s", lo=b+26, hi=b+26)); tasks.append(Task("s_barrier", "s", lo=b+27, hi=b+27))
            else:
                tasks.append(Task(f"WAITVM {tags} lgkm", "s", lo=b+27, hi=b+27))
        vm = []
        st = ks // 2 + NPRE
        if st < 10:
            d = dma(st)
            vm += [(k, x, f"W{st}") for k, x in (d[:6] if ks % 2 == 0 else d[6:])]
        if ks + LEAD < 20:
            vm += [("vm", yload(ks + LEAD, tb), f"Y{ks+LEAD}") for tb in range(2)]
        if st >= 10:
            n = (len(extra) + (20 - ks) - 1) // (20 - ks)
            vm += [("vm", x, "E") for x in extra[:n]]; extra = extra[n:]
        free = [b + 2 + 3*i for i in range(7)] + [b + 21 + i for i in range(5)]
        if ks == 19: free = [b + i for i in range(28)]
        fi = 0
        for k, x, tg in vm:
            if k == "s":
                g = free[fi] - 1 - (1 if "s41" in x else 0)
                tasks.append(Task(x, k, lo=g, hi=g))
            else:
                tasks.append(Task(x, k, lo=free[fi], hi=free[fi], tag=tg)); fi += 1
    assert 2*(0-NPRE) >= 2*(0-R)+1
    emit_sched(p, schedule(mf, tasks))
    p(ST(2))
    p("s_waitcnt vmcnt(0)")
    MU, RS = WF, WF + 4
    for tb in range(2):
        a = STT + 4*tb
        p(f"v_add_f32 v{a}, v{a}, v{a+2}", f"v_add_f32 v{a+1}, v{a+1}, v{a+3}")
        for sw in ("32", "16"):
            p(f"v_mov_b32 v{a+2}, v{a}", f"v_mov_b32 v{a+3}, v{a+1}", f"v_permlane{sw}_swap_b32 v{a}, v{a+2}", f"v_permlane{sw}_swap_b32 v{a+1}, v{a+3}",
              f"v_add_f32 v{a}, v{a}, v{a+2}", f"v_add_f32 v{a+1}, v{a+1}, v{a+3}")
        p(f"v_mul_f32 v{a}, {f32(-1/640)}, v{a}", f"v_mul_f32 v{a+1}, {f32(1/640)}, v{a+1}", f"v_fma_f32 v{a+1}, -v{a}, v{a}, v{a+1}",
          f"v_max_f32 v{a+1}, 0, v{a+1}", f"v_add_f32 v{a+1}, {f32(1e-5)}, v{a+1}", f"v_rsq_f32 v{a+2}, v{a+1}")
    p("v_mul_u32_u24 v9, 110592, v2", "v_lshl_add_u32 v9, v1, 4, v9", "v_add_u32 v15, 55296, v9", "s_mul_i32 s56, s35, 7")
    for j in range(7):
        p(f"s_add_u32 s57, s56, {j}", "s_cmp_ge_u32 s57, 108", f"s_cbranch_scc1 {name}_done",
          "s_lshr_b32 s58, s57, 1", "s_lshl_b32 s58, s58, 10", "s_and_b32 s57, s57, 1", "s_lshl_b32 s57, s57, 3", "s_add_u32 s57, s57, s58")
        for tb in range(2):
            a = STT + 4*tb
            t = WF + 16*((2*j + tb) % 4)
            for m in range(2):
                for i in range(4): p(f"v_accvgpr_read_b32 v{t+4*m+i}, a{ACC+56*tb+28*m+4*j+i}")
            for m in range(2):
                for i in (0, 2):
                    p(f"v_pk_fma_f32 {vr(t+4*m+i,2)}, {vr(UW+56*m+8*j+i,2)}, {vr(a,2)}, {vr(t+4*m+i,2)} op_sel_hi:[1,0,1]")
            for m in range(2):
                for i in (0, 2):
                    p(f"v_pk_fma_f32 {vr(t+4*m+i,2)}, {vr(t+4*m+i,2)}, {vr(a+2,2)}, {vr(UW+56*m+8*j+4+i,2)} op_sel_hi:[1,0,1]")
            for i in range(4): p(f"v_max_f32 v{t+i}, 0, v{t+i}")
            for i in (0, 2): p(f"v_pk_mul_f32 {vr(t+i,2)}, {vr(t+i,2)}, {vr(t+4+i,2)}")
            p(f"v_cvt_pk_bf16_f32 v{t+8}, v{t}, v{t+1}", f"v_cvt_pk_bf16_f32 v{t+9}, v{t+2}, v{t+3}",
              f"buffer_store_dwordx2 {vr(t+8,2)}, v{9 if tb == 0 else 15}, {sr(SH,4)}, s57 offen")
    p.label(f"{name}_done")
    if stamp:
        p(ST(3), "s_waitcnt vmcnt(0)", ST(4), "s_memrealtime s[82:83]", "s_waitcnt lgkmcnt(0)", stamp_out(6, 5, 3))
    p.label(f"{name}_end")
    p("s_endpgm")
    p.lines = fix_hazards(p.lines)
    return p.text(), dict(vgpr=512, acc=256, sgpr=96, lds=R*SLOT, grid=256, block=256)
```

```python
WS_H1 = 0
WS_MOD = 0x280000
WS_CS = 0x284000
WS_UW = 0x289000
WS_STATS = 0x290000
WS_Y = 0x2C0000
WS_X2 = 0x540000
WS_HH = 0x800000
WS_AO = 0x1000000
WS_PART = 0x2B0000
WS_WOF = 0x2000000
WS_WDF = 0x2600000
WS_GUF = 0x2900000
NAME = "adaLN_cond__gqa_block_cached__glu_gated_reglu__prompt"
```

```python
from asmlib import *
COST = {"e": 8, "a": 4, "ds": 4, "vm": 8, "s": 0, "b": 4}

class Task:
    def __init__(self, text, kind, lo=0, hi=10**9, after=None, tag=None, gapdist=1):
        self.text = text; self.kind = kind; self.lo = lo; self.hi = hi
        self.after = after or []
        self.gapdist = gapdist
        self.tag = tag; self.gap = None

def schedule(mf, tasks, cap=8):
    N = len(mf)
    pend = list(tasks)
    gaps = []
    g = 0
    while pend or g < N:
        room = cap; sal = None; ds = []; va = []; sal_extra = []
        unlimited = g >= N
        def ready(t):
            if t.lo > g: return False
            for a in t.after:
                if a.gap is None or a.gap + t.gapdist > g: return False
            return True
        while True:
            cand = [t for t in pend if ready(t)]
            cand.sort(key=lambda t: t.hi)
            placed = False
            for t in cand:
                forced = t.hi <= g or unlimited
                if t.kind in ("s", "b"):
                    if sal is None and (t.kind == "s" or room >= 4 or forced):
                        sal = t
                        if t.kind == "b": room -= 4
                    elif forced:
                        sal_extra.append(t)
                    else:
                        continue
                elif t.kind in ("ds", "vm"):
                    if (not ds and room >= COST[t.kind] and not (sal is not None and sal.kind == "b")) or forced:
                        ds.append(t); room -= COST[t.kind]
                    else:
                        continue
                else:
                    if room >= COST[t.kind] or forced:
                        va.append(t); room -= COST[t.kind]
                    else:
                        continue
                t.gap = g; pend.remove(t); placed = True
                break
            if not placed: break
        gaps.append(([sal] if sal else []) + sal_extra + ds + va)
        g += 1
        assert g < N + 10000
    out = []
    for i, gl in enumerate(gaps):
        if i < N: out.append((mf[i], None))
        for t in gl: out.append((t.text, t))
    return out

def fix_hazards(lines):
    out = []
    hist = []
    for l in lines:
        if l.endswith(":") or l.startswith("."):
            out.append(l); continue
        c = Ins(l)
        dist = 0; worst = 0
        for p in reversed(hist):
            if dist >= 20: break
            n = need(p, c)
            worst = max(worst, n - dist)
            dist += p.states
        if worst > 0:
            nop = f"s_nop {worst-1}"
            out.append(nop); hist.append(Ins(nop))
        out.append(l); hist.append(c)
        hist = hist[-24:]
    return out

WS_STAMP = 0x3000000
def stamp_out(wsreg, n, kidx=0):
    out = [f"s_add_u32 s84, s{wsreg}, {WS_STAMP + kidx*0x40000}", f"s_addc_u32 s85, s{wsreg+1}, 0", "s_mov_b32 s86, 0x40000", "s_mov_b32 s87, 0x20000",
           "v_lshrrev_b32 v1, 6, v0", "s_lshl_b32 s88, s2, 4", "v_add_u32 v1, s88, v1", "v_lshlrev_b32 v1, 6, v1"]
    for i in range(n):
        out += [f"s_sub_u32 s89, s{64+2*i}, s64", "v_mov_b32 v2, s89", f"buffer_store_dword v2, v1, s[84:87], 0 offen offset:{4*i}"]
    out += ["v_mov_b32 v2, s80", "buffer_store_dword v2, v1, s[84:87], 0 offen offset:56", "v_mov_b32 v2, s82", "buffer_store_dword v2, v1, s[84:87], 0 offen offset:60", "s_waitcnt vmcnt(0)"]
    return out
```

```python
from asmlib import *
from sched import *
from gen import build
from k1 import srd
FL = 0x100000
EX = 0x200000
def clear(name):
    p = Prog(); p.label(name)
    p("s_cmp_ge_u32 s2, 256", f"s_cbranch_scc1 {name}_end", "s_load_dwordx2 s[6:7], s[0:1], 104", "v_lshlrev_b32 v1, 4, v0", "s_waitcnt lgkmcnt(0)")
    srd(p, 8, 6, 7, 0x2000000)
    p("v_mov_b32 v4, 0", "s_lshl_b32 s20, s2, 7", f"s_add_u32 s20, s20, {FL}", "v_mov_b32 v2, 0", "buffer_store_dword v4, v2, s[8:11], s20 offen")
    for i in range(4): p(f"v_mov_b32 v{4+i}, -1")
    p("s_mul_i32 s20, s2, 61440", f"s_add_u32 s20, s20, {EX}")
    for i in range(15):
        p("buffer_store_dwordx4 v[4:7], v1, s[8:11], s20 offen", "s_add_u32 s20, s20, 4096")
    p.label(f"{name}_end"); p("s_endpgm")
    p.lines = fix_hazards(p.lines)
    return p.text(), dict(vgpr=32, acc=32, sgpr=96, lds=0, grid=256, block=256)
def xch(name, mode, samex, sc="sc1"):
    p = Prog(); p.label(name)
    ST = lambda i: [f"s_memtime s[{64+2*i}:{65+2*i}]"]
    p("s_memrealtime s[80:81]")
    p("s_cmp_ge_u32 s2, 256", f"s_cbranch_scc1 {name}_end", "s_load_dwordx2 s[6:7], s[0:1], 104", "v_and_b32 v1, 63, v0", "v_lshrrev_b32 v2, 6, v0", "v_lshlrev_b32 v3, 4, v1",
      "v_mul_u32_u24 v8, 5120, v2", "v_add_u32 v3, v3, v8", "v_add_u32 v9, 4096, v3", "s_waitcnt lgkmcnt(0)")
    srd(p, 8, 6, 7, 0x2000000)
    sh = 3 if samex else 0
    p(f"s_lshr_b32 s20, s2, {sh}", "s_and_b32 s20, s20, 3", f"s_andn2_b32 s21, s2, {3 << sh}")
    for i in range(60): p(f"v_mov_b32 v{16+i}, {i}")
    p("s_mov_b32 s30, 0"); p.label(f"{name}_w"); p("s_sleep 8", "s_add_u32 s30, s30, 1", "s_cmp_lt_u32 s30, 8", f"s_cbranch_scc1 {name}_w")
    p("s_barrier", ST(0), "s_waitcnt lgkmcnt(0)")
    for i in range(1, 4):
        p(f"s_add_u32 s22, s20, {i}", "s_and_b32 s22, s22, 3", f"s_lshl_b32 s22, s22, {sh}", "s_or_b32 s22, s22, s21", "s_mul_i32 s22, s22, 61440", f"s_add_u32 s22, s22, {EX + (i-1)*20480}")
        for nb in range(5):
            p(f"buffer_store_dwordx4 {vr(16+20*(i-1)+4*nb,4)}, v{3 if nb < 4 else 9}, s[8:11], s22 offen offset:{(nb%4)*1024} {sc}")
    p(ST(1))
    p("s_mul_i32 s23, s2, 61440", f"s_add_u32 s23, s23, {EX}", "s_add_u32 s24, s23, 20480", "s_add_u32 s25, s23, 40960")
    def loads():
        return [f"buffer_load_dwordx4 {vr(80+20*i+4*nb,4)}, v{3 if nb < 4 else 9}, s[8:11], s{23+i} offen offset:{(nb%4)*1024} {sc}" for i in range(3) for nb in range(5)]
    if mode == "flag":
        p("s_waitcnt vmcnt(0)", ST(2), "s_barrier")
        p("v_mov_b32 v4, 1", "v_mov_b32 v5, 0", "s_lshl_b32 s26, s2, 7", f"s_add_u32 s26, s26, {FL}", "v_readfirstlane_b32 s27, v2", "s_cmp_lg_u32 s27, 0", f"s_cbranch_scc1 {name}_poll",
          f"buffer_store_dword v4, v5, s[8:11], s26 offen {sc}")
        p.label(f"{name}_poll")
        p("v_and_b32 v5, 3, v1", f"v_lshlrev_b32 v5, {7+sh}, v5", "s_lshl_b32 s26, s21, 7", f"s_add_u32 s26, s26, {FL}", "s_mov_b32 s30, 0")
        p.label(f"{name}_p2")
        p(f"buffer_load_dword v6, v5, s[8:11], s26 offen {sc}", "s_add_u32 s30, s30, 1", "s_waitcnt vmcnt(0)", "v_cmp_eq_u32 vcc, 0, v6",
          "s_cmp_gt_u32 s30, 0x10000", f"s_cbranch_scc1 {name}_go", f"s_cbranch_vccnz {name}_p2")
        p.label(f"{name}_go")
        p(ST(3), loads(), "s_waitcnt vmcnt(0)")
    else:
        p(ST(2), "s_mov_b32 s30, 0")
        p.label(f"{name}_p2")
        p(ST(3), loads(), "s_add_u32 s30, s30, 1", "s_waitcnt vmcnt(0)")
        p("v_and_b32 v6, v80, v84")
        p("v_max_u32 v6, v80, v84")
        for j in range(2, 15): p(f"v_max_u32 v6, v6, v{80+4*j}")
        p("v_cmp_eq_u32 vcc, -1, v6", "s_cmp_gt_u32 s30, 0x1000", f"s_cbranch_scc1 {name}_go", f"s_cbranch_vccnz {name}_p2")
        p.label(f"{name}_go")
    p(ST(4), "s_waitcnt lgkmcnt(0)", "s_mov_b32 s74, s64", "s_add_u32 s74, s74, s30", "s_memrealtime s[82:83]", "s_waitcnt lgkmcnt(0)", stamp_out(6, 6, 0))
    p.label(f"{name}_end"); p("s_endpgm")
    p.lines = fix_hazards(p.lines)
    return p.text(), dict(vgpr=256, acc=256, sgpr=96, lds=100000, grid=256, block=256)
ks = [("clr_kernel", clear("clr_kernel"))]
for nm, a in (("fx_kernel", ("flag", False)), ("fs_kernel", ("flag", True)), ("gx_kernel", ("gran", False)), ("gs_kernel", ("gran", True)), ("fx2_kernel", ("flag", False, "sc0 sc1")), ("gx2_kernel", ("gran", False, "sc0 sc1"))):
    ks.append((nm, xch(nm, *a)))
build(ks, "mb13.s")
```

```python
from gen import build
txt = "flush_kernel:\n" + "    v_mov_b32 v1, 0x12345678\n" * 20000 + "    s_endpgm\n"
build([("flush_kernel", (txt, dict(vgpr=32, acc=32, sgpr=32, lds=0, grid=1024, block=256)))], "flush.s")
```

```python
import sys
from layout import *
import k2
def build(kernels, path):
    ref = open("cdna_kernels/" + NAME + ".s.ref").read()
    head = [l for l in ref.splitlines() if l.startswith(";") and "@launch" not in l and "Override" not in l and "grid=ceil" not in l]
    out = list(head)
    single = len(kernels) == 1 and kernels[0][0] == NAME + "_kernel"
    for nm, (txt, cfg) in kernels:
        if single:
            out.append(f"; @launch grid=({cfg['grid']},1,1) block=({cfg['block']},1,1) lds={cfg['lds']}")
            continue
        out.append(f"; @launch kernel={nm} grid=({cfg['grid']},1,1) block=({cfg['block']},1,1) lds={cfg['lds']}")
    out.append('.amdgcn_target "amdgcn-amd-amdhsa--gfx950"\n.text')
    for nm, (txt, cfg) in kernels:
        out.append(f".globl {nm}\n.p2align 8\n.type {nm},@function\n" + txt)
    out.append('.section .rodata,"a"')
    for nm, (txt, cfg) in kernels:
        out.append(f""".p2align 6
.amdhsa_kernel {nm}
  .amdhsa_next_free_vgpr {cfg['vgpr']}
  .amdhsa_next_free_sgpr {cfg['sgpr']}
  .amdhsa_accum_offset {cfg['acc']}
  .amdhsa_group_segment_fixed_size 0
  .amdhsa_kernarg_size 112
  .amdhsa_user_sgpr_count 2
  .amdhsa_user_sgpr_kernarg_segment_ptr 1
  .amdhsa_system_sgpr_workgroup_id_x 1
.end_amdhsa_kernel""")
    open(path, "w").write("\n".join(out) + "\n")
KN = NAME + "_kernel"
def short(r):
    return (r[0].replace("MK_", "L").replace("MK:", KN + ":").replace("-MK-", "-" + KN + "-"), r[1])
STD = ["start", "pa", "pb", "qend", "tail", "norm", "p1", "p2end", "p2", "p3end", "p3", "end"]
SA = ["start", "tail", "norm", "pub1", "p1", "p2end", "x2", "epi2", "pub2", "p2", "p3end", "end"]
SB = ["start", "pb", "q0", "q4", "q8", "q12", "q16", "q19", "qend", "p2", "p3end", "epi3"]
SC = ["start", "p2", "p3end", "epi3", "pub3", "p3", "p4end", "end"]
if __name__ == "__main__":
    import mega
    build([(KN, short(mega.gen_mega("MK")))], "cdna_kernels/" + NAME + ".s")
    for st, path in ((STD, "megastamp.s"), (SA, "stampA.s"), (SB, "stampB.s"), (SC, "stampC.s")):
        build([(KN, short(mega.gen_mega("MK", stamp=st)))], path)
```

```python
WS_H1 = 0
WS_MOD = 0x280000
WS_CS = 0x284000
WS_UW = 0x289000
WS_STATS = 0x290000
WS_Y = 0x2C0000
WS_X2 = 0x540000
WS_HH = 0x800000
WS_AO = 0x1000000
WS_PART = 0x2B0000
WS_WOF = 0x2000000
WS_WDF = 0x2600000
WS_GUF = 0x2900000
WS_F0 = 0x2E00000
WS_F1 = 0x2E04000
WS_F2 = 0x2E0C000
WS_F3 = 0x2E14000
WS_FP = 0x2E1C000
WS_G1 = 0x2E40000
WS_G2 = 0x2E60000
WS_G3 = 0x2E80000
WS_GH = 0x2EA0000
NAME = "adaLN_cond__gqa_block_cached__glu_gated_reglu__prompt"
```

```python
from asmlib import *
from sched import *
from layout import *
from k1 import srd, f32, QSCALE
import k2
from k2 import *
import math
WS = "s[52:55]"
OOB = 0x4000000
sNON = 3

def poll(p, lab, loads, sleep=1):
    p("s_mov_b32 s33, 0")
    p.label(lab)
    for d, a, so in loads: p(f"buffer_load_dword v{d}, v{a}, {WS}, {so} offen sc1")
    p("s_add_u32 s33, s33, 1", "s_waitcnt vmcnt(0)")
    check(p, [d for d, _, _ in loads])
    p(f"s_cbranch_vccz {lab}_ok", "s_cmp_gt_u32 s33, 0x8000", f"s_cbranch_scc1 {lab}_ok")
    if sleep: p(f"s_sleep {sleep}")
    p(f"s_branch {lab}")
    p.label(f"{lab}_ok")
    p.vm = []
def early_poll(p, lab, ld, seq, nafter, emit):
    d, a, so = ld
    if nafter == 0:
        emit(p, seq); poll(p, lab, [ld]); return
    emit(p, seq[:-nafter])
    p.vmem(f"buffer_load_dword v{d}, v{a}, {WS}, {so} offen sc1", "FLAG")
    emit(p, seq[-nafter:])
    p(f"s_waitcnt vmcnt({p.vmwait_n(['FLAG'])})")
    check(p, [d])
    p(f"s_cbranch_vccz {lab}_ok")
    save = list(p.vm)
    poll(p, lab, [ld])
    p.vm = save
def check(p, regs):
    if len(regs) == 1:
        p(f"v_cmp_ne_u32 vcc, s{sNON}, v{regs[0]}", "s_nop 1")
        return
    for r in regs: p(f"v_xor_b32 v{r}, s{sNON}, v{r}")
    for r in regs[1:]: p(f"v_or_b32 v{regs[0]}, v{regs[0]}, v{r}")
    p(f"v_cmp_ne_u32 vcc, 0, v{regs[0]}", "s_nop 1")
def set_flag(p, lab, soff, t0=8, t1=9):
    p(f"s_cmp_lg_u32 s{sWAVE}, 0", f"s_cbranch_scc1 {lab}", f"v_mov_b32 v{t0}, s{sNON}", f"v_mov_b32 v{t1}, 0",
      f"buffer_store_dword v{t0}, v{t1}, {WS}, {soff} offen sc1")
    p.label(lab)

def gen_mega(name, stamp=False, LEAD=4, NW_A=0, NW_B=8, NW4=0, NE3=0, CT=True, EP=(24, 10, 10), TW=True, CW=3, NE=6, WQNT='nt', XNT='nt', PSC='sc1', PSL=2, PSL2=1, DEL=0, DELE=0, **kw):
    p = Prog()
    def ST(nm):
        if not stamp or nm not in stamp: return []
        i = stamp.index(nm)
        return [f"s_memtime s[{64+2*i}:{65+2*i}]"]
    p.label(name)
    if stamp: p("s_memrealtime s[88:89]")
    p(ST("start"))
    p("s_cmp_ge_u32 s2, 256", f"s_cbranch_scc1 {name}_end",
      "s_load_dwordx4 s[40:43], s[0:1], 96", "s_load_dwordx4 s[12:15], s[0:1], 72", "s_load_dwordx8 s[4:11], s[0:1], 0",
      "s_load_dwordx4 s[56:59], s[0:1], 48", "s_load_dwordx2 s[90:91], s[0:1], 32", "s_load_dwordx2 s[92:93], s[0:1], 64",
      "s_memrealtime s[46:47]")
    if CT:
        p("s_getpc_b64 s[48:49]", "s_mov_b32 s50, 8192", "s_mov_b32 s51, 0x20000", "v_lshlrev_b32 v16, 7, v0", "buffer_load_dword v17, v16, s[48:51], 0 offen")
    p("v_and_b32 v1, 63, v0", "v_lshrrev_b32 v2, 6, v0", "v_and_b32 v3, 15, v0", "v_bfe_u32 v4, v0, 4, 2",
      "v_bfe_u32 v5, v0, 2, 2", "v_and_b32 v6, 3, v0", f"v_readfirstlane_b32 s{sWAVE}, v2",
      "v_and_b32 v12, 7, v0", "v_lshrrev_b32 v13, 3, v0", "v_mov_b32 v15, 0")
    p("s_and_b32 s44, s2, 7", "s_lshl_b32 s44, s44, 2", "s_bfe_u32 s45, s2, 0x20003", "s_or_b32 s44, s44, s45", "s_lshr_b32 s45, s2, 5")
    p(f"s_lshl_b32 s{sWOFF}, s{sWAVE}, 12")
    p("v_lshlrev_b32 v7, 1, v4", "v_xor_b32 v8, v3, v7", "v_xor_b32 v9, 8, v8", "v_lshl_add_u32 v10, v2, 4, v4", "v_lshlrev_b32 v11, 13, v10")
    for t in range(4):
        p(f"v_lshl_add_u32 v{WV+t}, v{8+(t>>1)}, 4, v11")
        if t: p(f"v_add_u32 v{WV+t}, {t*(4*8192-1024)}, v{WV+t}")
    p("v_lshlrev_b32 v11, 8, v10", f"v_lshl_add_u32 v{DV}, v8, 4, v11", f"v_lshl_add_u32 v{DV+1}, v9, 4, v11")
    p("s_waitcnt lgkmcnt(0)")
    srd(p, 36, 40, 41, 256); srd(p, 52, 42, 43, 0x3000000)
    p("s_or_b32 s46, s46, 1", "s_or_b32 s47, s2, s28", "s_cmp_lg_u32 s47, 0", f"s_cbranch_scc1 {name}_nn",
      "v_mov_b32 v14, s46", "buffer_store_dword v14, v15, s[36:39], 0 offen sc1")
    p.label(f"{name}_nn")
    p("s_lshl_b32 s46, s44, 8", f"s_add_u32 s{SW}, s10, s46", f"s_addc_u32 s{SW+1}, s11, 0", f"s_sub_u32 s{SW+2}, 5242880, s46", f"s_mov_b32 s{SW+3}, 0x20000")
    def wq_dma(w):
        return [f"buffer_load_dwordx4 v{WV+t}, {sr(SW,4)}, s47 offen offset:{t*1024} {WQNT} lds" for t in range(4)]
    def wq_early(lo=0, hi=NE):
        out = []
        for w in range(lo, hi):
            out += [f"s_add_u32 m0, s{sWOFF}, {w*16384}", f"s_mov_b32 s47, {w*524288}"] + wq_dma(w)
        return out
    def nonce_load(): return ["buffer_load_dword v14, v15, s[36:39], 0 offen sc1"]
    def nonce_get(lab):
        return [f"{lab}:", "s_waitcnt vmcnt(0)", f"v_readfirstlane_b32 s{sNON}, v14", "s_add_u32 s33, s33, 1", "s_cmp_gt_u32 s33, 0x8000", f"s_cbranch_scc1 {lab}_ok",
                f"s_cmp_lg_u32 s{sNON}, 0", f"s_cbranch_scc1 {lab}_ok"] + nonce_load() + [f"s_branch {lab}", f"{lab}_ok:"]
    SCR = 147456
    p(ST("karg"))
    p("s_mov_b32 s33, 0", "s_lshl_b32 s35, s2, 7", f"s_add_u32 s35, s35, {WS_FP}")
    p("s_cmp_ge_u32 s2, 128", f"s_cbranch_scc1 {name}_cons", "s_cmp_ge_u32 s2, 80", f"s_cbranch_scc1 {name}_idle")
    W0, CK, AC, X = 16, 96, 136, 144
    srd(p, 20, 12, 13, 1280); srd(p, 24, 14, 15, 4915200)
    p("s_cmp_ge_u32 s2, 20", "s_cselect_b32 s30, 1, 0", "s_cmp_ge_u32 s2, 40", "s_cselect_b32 s30, 0, s30",
      "s_sub_u32 s31, s2, 20", "s_cmp_ge_u32 s2, 20", "s_cselect_b32 s31, s31, s2",
      "s_lshl_b32 s46, s31, 7", f"s_mul_i32 s47, s30, {320*7680}", "s_add_u32 s46, s46, s47", "s_mul_i32 s47, s30, 640",
      "v_mul_u32_u24 v11, 7680, v13", "v_lshl_add_u32 v11, v12, 4, v11", "v_lshlrev_b32 v10, 1, v13")
    if DELE:
        p("s_cmp_lt_u32 s2, 40", f"s_cbranch_scc1 {name}_nodel", ["s_sleep 64"] * DELE)
        p.label(f"{name}_nodel")
    for i in range(20): p(f"buffer_load_ushort v{CK+i}, v10, s[20:23], s47 offen offset:{64*i}")
    for i in range(20):
        if i == 10: p("s_cmp_lt_u32 s2, 40", f"s_cbranch_scc1 {name}_half")
        p(f"buffer_load_dwordx4 {vr(W0+4*i,4)}, v11, s[24:27], s46 offen nt", f"s_add_u32 s46, s46, {32*7680}")
    p.label(f"{name}_half")
    p("s_waitcnt vmcnt(10)", f"s_mov_b32 s46, {f32(-math.log2(math.e))}")
    for h in range(2):
        rg = range(10*h, 10*h + 10)
        for i in rg: p(f"v_lshlrev_b32 v{CK+i}, 16, v{CK+i}")
        for i in rg: p(f"v_mul_f32 v{X+i}, s46, v{CK+i}")
        for i in rg: p(f"v_exp_f32 v{X+i}, v{X+i}")
        for i in rg: p(f"v_add_f32 v{X+i}, 1.0, v{X+i}")
        for i in rg: p(f"v_rcp_f32 v{X+i}, v{X+i}")
        for i in rg: p(f"v_mul_f32 v{X+i}, v{X+i}, v{CK+i}")
        for i in rg: p(f"v_cvt_pk_bf16_f32 v{CK+i}, v{X+i}, 0", f"v_cvt_pk_bf16_f32 v{CK+20+i}, 0, v{X+i}")
    p(ST("a1"), "s_waitcnt vmcnt(0)", ST("a2"), nonce_load())
    for i in range(20):
        if i == 10: p("s_cmp_lt_u32 s2, 40", f"s_cbranch_scc1 {name}_red")
        for j in range(4):
            for h in range(2):
                a = AC + 2*j + h
                p(f"v_dot2_f32_bf16 v{a}, v{W0+4*i+j}, v{CK+20*h+i}, {'v%d' % a if i else 0}")
    p.label(f"{name}_red")
    p("s_nop 2")
    for a in range(AC, AC+8): p(f"v_add_f32_dpp v{a}, v{a}, v{a} row_ror:8 row_mask:0xf bank_mask:0xf")
    for a in range(AC, AC+4): p(f"v_permlane32_swap_b32 v{a}, v{a+4}")
    for a in range(AC, AC+4): p(f"v_add_f32 v{a}, v{a}, v{a+4}")
    for a in range(AC, AC+2): p(f"v_permlane16_swap_b32 v{a}, v{a+2}")
    for a in range(AC, AC+2): p(f"v_add_f32 v{a}, v{a}, v{a+2}")
    p("v_lshlrev_b32 v11, 8, v2", "v_lshl_add_u32 v11, v12, 5, v11", "v_lshl_add_u32 v11, v4, 3, v11", f"v_add_u32 v11, {SCR}, v11", f"ds_write_b64 v11, {vr(AC,2)}",
      "v_lshlrev_b32 v10, 2, v1", f"v_add_u32 v11, {SCR}, v10")
    p(ST("a3"))
    p(nonce_get(f"{name}_n1"))
    p(ST("a4"))
    p("s_waitcnt lgkmcnt(0)", "s_barrier", f"s_cmp_lg_u32 s{sWAVE}, 0", f"s_cbranch_scc1 {name}_wq")
    for w in range(4): p(f"ds_read_b32 v{W0+w}, v11 offset:{256*w}")
    p("s_waitcnt lgkmcnt(0)")
    for a, b in ((0,1),(2,3),(0,2)): p(f"v_add_f32 v{W0+a}, v{W0+a}, v{W0+b}")
    p("s_cmp_ge_u32 s2, 40", f"s_cbranch_scc1 {name}_extra")
    p("s_lshl_b32 s46, s31, 9", "s_mul_i32 s47, s30, 10240", "s_add_u32 s46, s46, s47", f"s_add_u32 s46, s46, {WS_PART}",
      f"v_mov_b32 v{W0+1}, s{sNON}", "v_lshlrev_b32 v10, 3, v1", ST("pa"),
      f"buffer_store_dwordx2 {vr(W0,2)}, v10, {WS}, s46 offen {PSC}", f"s_branch {name}_wq")
    p.label(f"{name}_extra")
    p(f"v_cvt_pk_bf16_f32 v{W0}, 0, v{W0}", f"v_add_f32 v{W0+1}, 1.0, v{W0}", f"v_cvt_pk_bf16_f32 v{W0+1}, 0, v{W0+1}",
      "s_lshl_b32 s46, s31, 8", f"s_add_u32 s46, s46, {WS_MOD}",
      "s_cmp_ge_u32 s31, 40", "s_cselect_b32 s30, 1, 0", "s_cmp_lt_u32 s31, 50", "s_cselect_b32 s30, s30, 0",
      "s_cmp_eq_u32 s30, 1", "s_cselect_b64 vcc, -1, 0", f"v_cndmask_b32 v{W0}, v{W0}, v{W0+1}, vcc",
      f"buffer_store_dword v{W0}, v10, {WS}, s46 offen sc1")
    p("s_cmp_lt_u32 s31, 30", f"s_cbranch_scc1 {name}_pub", "s_cmp_ge_u32 s31, 50", f"s_cbranch_scc1 {name}_pub")
    p("s_sub_u32 s46, s31, 30", "s_sub_u32 s47, s31, 40", "s_cmp_eq_u32 s30, 1", "s_cselect_b32 s46, s47, s46", "s_cselect_b32 s47, 0, 16",
      "s_lshl_b32 s46, s46, 11", "s_add_u32 s46, s46, s47", f"s_add_u32 s46, s46, {WS_CS}",
      "v_lshrrev_b32 v12, 5, v0", "v_lshlrev_b32 v12, 10, v12", "v_lshl_add_u32 v12, v5, 8, v12",
      "v_bfe_u32 v13, v0, 4, 1", "v_lshl_add_u32 v12, v13, 3, v12", "v_lshl_add_u32 v12, v6, 1, v12",
      f"buffer_store_short_d16_hi v{W0}, v12, {WS}, s46 offen sc1")
    p.label(f"{name}_pub")
    p(ST("pa"))
    p(f"v_mov_b32 v14, s{sNON}", "s_waitcnt vmcnt(0)", ST("a5"), f"buffer_store_dword v14, v15, {WS}, s35 offen sc1", f"s_branch {name}_wq")
    p.label(f"{name}_idle")
    if CT:
        p(f"s_mov_b32 s50, {name}_end-{name}-64", "s_mov_b32 s46, 8192", "s_mov_b32 s47, 40960", "buffer_load_dword v17, v16, s[48:51], s46 offen", "buffer_load_dword v18, v16, s[48:51], s47 offen")
    p(nonce_load(), nonce_get(f"{name}_n2"))
    p.label(f"{name}_wq")
    if DEL: p(["s_sleep 64"] * DEL)
    p(wq_early(), f"s_branch {name}_join")
    p.label(f"{name}_cons")
    XR, XF, PS = 16, 36, 80
    srd(p, 20, 4, 5, 2621440)
    p("s_sub_u32 s31, s2, 128", "s_mul_i32 s31, s31, 20480",
      "v_mul_u32_u24 v11, 1280, v3", "v_mul_u32_u24 v10, 320, v2", "v_add_u32 v11, v11, v10", "v_lshl_add_u32 v11, v4, 4, v11")
    for i in range(5): p(f"buffer_load_dwordx4 {vr(XR+4*i,4)}, v11, s[20:23], s31 offen offset:{64*i} {XNT}")
    p(ST("a1"), "v_mov_b32 v13, 0x3f803f80", "s_waitcnt vmcnt(0)", ST("a2"), nonce_load())
    for i in range(20):
        p(f"v_dot2_f32_bf16 v12, v{XR+i}, v13, {'v12' if i else 0}", f"v_dot2_f32_bf16 v10, v{XR+i}, v{XR+i}, {'v10' if i else 0}")
    p("v_permlane32_swap_b32 v12, v10", "v_add_f32 v12, v12, v10", "v_mov_b32 v10, v12", "v_permlane16_swap_b32 v12, v10", "v_add_f32 v12, v12, v10")
    p("v_lshlrev_b32 v11, 7, v2", "v_lshl_add_u32 v11, v3, 3, v11", "v_lshrrev_b32 v10, 5, v1", "v_lshl_add_u32 v11, v10, 2, v11", f"v_add_u32 v11, {SCR}, v11", "ds_write_b32 v11, v12")
    for i in range(20):
        p(f"v_lshlrev_b32 v{XF+2*i}, 16, v{XR+i}", f"v_and_b32 v{XF+2*i+1}, 0xffff0000, v{XR+i}")
    p("s_waitcnt lgkmcnt(0)", "s_barrier", "v_lshlrev_b32 v11, 3, v3", f"v_add_u32 v11, {SCR}, v11")
    a = PS
    for w in range(4): p(f"ds_read_b64 {vr(a+2*w,2)}, v11 offset:{128*w}")
    p("s_waitcnt lgkmcnt(0)")
    for x, y in ((0,2),(4,6),(0,4)): p(f"v_pk_add_f32 {vr(a+x,2)}, {vr(a+x,2)}, {vr(a+y,2)}")
    p(f"v_mul_f32 v{a}, {f32(1/640)}, v{a}", f"v_mul_f32 v{a+1}, {f32(1/640)}, v{a+1}", f"v_fma_f32 v{a+1}, -v{a}, v{a}, v{a+1}",
      f"v_max_f32 v{a+1}, 0, v{a+1}", f"v_add_f32 v{a+1}, {f32(1e-5)}, v{a+1}", f"v_rsq_f32 v{a+2}, v{a+1}", f"v_mul_f32 v{a}, v{a}, v{a+2}", f"v_sub_f32 v{a}, 0, v{a}")
    for i in range(0, 40, 2):
        p(f"v_pk_fma_f32 {vr(XF+i,2)}, {vr(XF+i,2)}, {vr(a+2,2)}, {vr(a,2)} op_sel_hi:[1,0,0]")
    p(ST("a3"))
    p(nonce_get(f"{name}_n3"))
    p(ST("a4"))
    p(wq_early(0, CW))
    p("v_min_u32 v10, 39, v1", "v_mul_u32_u24 v11, 1280, v2", "v_lshl_add_u32 v11, v10, 5, v11",
      f"s_mov_b32 s30, {WS_PART}", f"s_mov_b32 s34, {WS_PART+10240}", f"s_mov_b32 s46, {WS_PART+5120}", f"s_mov_b32 s47, {WS_PART+15360}",
      "v_mul_u32_u24 v12, 1280, v2", f"v_add_u32 v12, {SCR+1024}, v12", "v_lshl_add_u32 v13, v4, 5, v12", "v_lshl_add_u32 v12, v10, 4, v12", "s_mov_b32 s33, 0")
    GR = 128
    p.label(f"{name}_pa")
    for k_, so in enumerate(("s30", "s34", "s46", "s47")):
        p(f"buffer_load_dwordx4 {vr(GR+8*k_,4)}, v11, {WS}, {so} offen {PSC}", f"buffer_load_dwordx4 {vr(GR+8*k_+4,4)}, v11, {WS}, {so} offen offset:16 {PSC}")
    p("s_add_u32 s33, s33, 1", "s_waitcnt vmcnt(0)")
    check(p, [GR + 2*i + 1 for i in range(16)])
    p(f"s_cbranch_vccz {name}_pa_ok", "s_cmp_gt_u32 s33, 0x8000", f"s_cbranch_scc1 {name}_pa_ok", f"s_sleep {PSL}", f"s_branch {name}_pa")
    p.label(f"{name}_pa_ok")
    p(ST("pa"))
    for i in range(4):
        p(f"v_add_f32 v{PS+i}, v{GR+2*i}, v{GR+8+2*i}", f"v_add_f32 v{PS+8+i}, v{GR+16+2*i}, v{GR+24+2*i}",
          f"v_cvt_pk_bf16_f32 v{PS+i}, 0, v{PS+i}", f"v_cvt_pk_bf16_f32 v{PS+8+i}, 0, v{PS+8+i}", f"v_add_f32 v{PS+8+i}, 1.0, v{PS+8+i}",
          f"v_mul_f32 v{PS+i}, {f32(QSCALE)}, v{PS+i}", f"v_cvt_pk_bf16_f32 v{PS+8+i}, 0, v{PS+8+i}", f"v_mul_f32 v{PS+8+i}, {f32(QSCALE)}, v{PS+8+i}")
    p(f"ds_write_b128 v12, {vr(PS,4)}", f"ds_write_b128 v12, {vr(PS+8,4)} offset:640", "s_waitcnt lgkmcnt(0)")
    for i in range(10):
        o_ = 128*(i//2) + 16*(i%2)
        p(f"ds_read_b128 {vr(PS+4*i,4)}, v13 offset:{o_}", f"ds_read_b128 {vr(PS+40+4*i,4)}, v13 offset:{640 + o_}")
    p("v_mul_u32_u24 v11, 5120, v2", "v_lshl_add_u32 v11, v1, 4, v11", f"s_add_u32 s31, s31, {WS_H1}", "s_add_u32 s30, s31, 4096")
    for t in range(5):
        p(f"s_waitcnt lgkmcnt({min(15, 16 - 4*t)})")
        for i in range(8*t, 8*t + 8, 2):
            p(f"v_pk_fma_f32 {vr(XF+i,2)}, {vr(XF+i,2)}, {vr(PS+40+i,2)}, {vr(PS+i,2)}")
        for i in range(4*t, 4*t + 4):
            p(f"v_cvt_pk_bf16_f32 v{XR+i}, v{XF+2*i}, v{XF+2*i+1}")
        p(f"buffer_store_dwordx4 {vr(XR+4*t,4)}, v11, {WS}, s{31 if t < 4 else 30} offen offset:{1024*(t%4)} sc1")
    p(ST("a6"), "s_waitcnt vmcnt(0)", "s_barrier")
    set_flag(p, f"{name}_j0", "s35")
    p(wq_early(CW, NE))
    p.label(f"{name}_join")
    p(ST("a7"))
    p.vm = []
    for i in range(4): p(f"s_mov_b32 s{sH4+i}, {4096*(i+1)}")
    p(f"s_mov_b32 s{sTHR}, 0x53800000")
    p("v_mul_u32_u24 v11, 81920, v2", "v_lshl_add_u32 v11, v1, 4, v11")
    for q in range(4): p(f"v_add_u32 v{HV+q}, {q*20480}, v11")
    p("s_lshl_b32 s46, s44, 19",
      f"s_add_u32 s{SV}, s8, s46", f"s_addc_u32 s{SV+1}, s9, 0", f"s_mov_b32 s{SV+2}, 0x80000", f"s_mov_b32 s{SV+3}, 0x20000",
      f"s_add_u32 s{SK}, s6, s46", f"s_addc_u32 s{SK+1}, s7, 0", f"s_mov_b32 s{SK+2}, 0x80000", f"s_mov_b32 s{SK+3}, 0x20000",
      "s_mul_i32 s46, s45, 327680", f"s_add_u32 s46, s46, {WS_H1}",
      f"s_add_u32 s{SH}, s42, s46", f"s_addc_u32 s{SH+1}, s43, 0", f"s_mov_b32 s{SH+2}, 327680", f"s_mov_b32 s{SH+3}, 0x20000",
      "s_lshl_b32 s46, s45, 21", f"s_add_u32 s46, s46, {WS_AO}",
      f"s_add_u32 s{SO}, s42, s46", f"s_addc_u32 s{SO+1}, s43, 0", f"s_mov_b32 s{SO+2}, 0x200000", f"s_mov_b32 s{SO+3}, 0x20000")
    p("v_and_b32 v7, 7, v3", "v_lshlrev_b32 v7, 1, v7", "v_xor_b32 v7, v4, v7", "v_lshlrev_b32 v8, 8, v3")
    for ks in range(4): p(f"v_xor_b32 v9, {4*ks}, v7", f"v_lshl_add_u32 v{KA+ks}, v9, 4, v8")
    p("v_lshl_add_u32 v7, v4, 2, v5", "v_and_b32 v8, 7, v7", "v_lshlrev_b32 v7, 8, v7")
    p("v_lshl_add_u32 v9, v6, 3, v7", f"v_add_u32 v9, {VBASE}, v9")
    for db in range(8): p(f"v_xor_b32 v10, {db}, v8", f"v_lshl_add_u32 v{VA+db}, v10, 5, v9")
    p("v_lshlrev_b32 v8, 1, v8", "v_xor_b32 v8, v6, v8", "v_lshl_add_u32 v7, v4, 10, v7")
    for t in range(4):
        p(f"v_xor_b32 v10, {4*t}, v8", f"v_lshl_add_u32 v{WA+t}, v10, 4, v7", f"v_add_u32 v{WA+4+t}, 0x10000, v{WA+t}", f"v_add_u32 v{WA+8+t}, 0x20000, v{WA+t}")
    p("v_lshlrev_b32 v7, 19, v2", "v_lshl_add_u32 v7, v1, 4, v7", "s_lshl_b32 s46, s44, 12", f"v_add_u32 v{OV}, s46, v7")
    for i in range(4): p(f"v_mov_b32 v{ONES+i}, 0x3f803f80")
    p("s_lshr_b32 s60, s2, 3", "s_min_u32 s60, s60, 26", "s_and_b32 s61, s2, 7", "s_mul_i32 s61, s61, 27", "s_add_u32 s60, s60, s61",
      "s_sub_u32 s61, s60, 108", "s_cmp_ge_u32 s60, 108", "s_cselect_b32 s61, s61, s60", "s_cselect_b32 s48, s58, s56", "s_cselect_b32 s49, s59, s57",
      "s_cselect_b32 s57, 7168, 0", "s_mov_b32 s50, 2211840", "s_mov_b32 s51, 0x20000",
      "s_mul_i32 s58, s61, 9363", "s_lshr_b32 s58, s58, 16", "s_mul_i32 s59, s58, 7", "s_sub_u32 s59, s61, s59",
      "s_and_b32 s46, s58, 1", "s_sub_u32 s59, s59, s46", "s_cselect_b32 s59, 6, s59",
      "s_mul_i32 s58, s58, 286720", "s_lshl_b32 s59, s59, 10", "s_add_u32 s57, s57, s58", "s_add_u32 s57, s57, s59",
      f"s_mul_i32 s58, s{sWAVE}, 71680", "s_add_u32 s57, s57, s58", f"s_add_u32 s57, s57, {WS_GUF}",
      "s_lshl_b32 s56, s61, 5", f"s_mul_i32 s58, s{sWAVE}, {5*110592}", "s_add_u32 s56, s56, s58",
      f"s_mul_i32 s58, s{sWAVE}, 5120", f"s_add_u32 s58, s58, {WS_CS}", "s_mov_b32 s59, 3456", "s_mov_b32 s94, 110592", "s_mov_b32 s95, 14336",
      "s_mov_b32 s96, s90", "s_mov_b32 s97, s91", "s_mov_b32 s98, 5242880", "s_mov_b32 s99, 0x20000",
      "s_lshr_b32 s46, s2, 1", "s_mul_i32 s46, s46, 40960", "s_and_b32 s47, s2, 1", "s_mul_i32 s47, s47, 20", f"s_add_u32 s47, s47, s{sWAVE}",
      "s_lshl_b32 s61, s47, 5", "s_add_u32 s61, s61, s46", "s_lshl_b32 s63, s47, 10", "s_add_u32 s63, s63, s46", f"s_add_u32 s63, s63, {WS_WOF}",
      "s_mul_i32 s46, s2, 6554", "s_lshr_b32 s46, s46, 16", "s_mul_i32 s47, s46, 10", "s_sub_u32 s47, s2, s47", "s_lshl_b32 s47, s47, 2", f"s_add_u32 s47, s47, s{sWAVE}",
      "s_mul_i32 s46, s46, 40960", "s_lshl_b32 s90, s47, 5", "s_add_u32 s90, s90, s46", "s_lshl_b32 s91, s47, 10", "s_add_u32 s91, s91, s46", f"s_add_u32 s91, s91, {WS_WDF}",
      "s_cmp_ge_u32 s2, 180", f"s_cselect_b32 s90, {OOB}, s90", f"s_cselect_b32 s91, {OOB}, s91",
      "s_lshl_b32 s101, s2, 6", f"s_add_u32 s101, s101, {WS_F0}", f"s_cmp_eq_u32 s{sWAVE}, 0", f"s_cselect_b32 s101, s101, {OOB}", f"s_mov_b32 s100, {OOB}",
      f"s_lshl_b32 s62, s{sWAVE}, 11", "s_add_u32 s62, s62, 0x20000")
    p(f"v_lshrrev_b32 v{JROW}, 1, v1", f"v_and_b32 v{JC16}, 1, v1", f"v_lshlrev_b32 v{JC16}, 4, v{JC16}",
      f"v_mul_u32_u24 v{JVB}, 1280, v{JROW}", f"v_add_u32 v{JVB}, v{JVB}, v{JC16}", f"v_lshlrev_b32 v{JL16}, 4, v1",
      f"v_mov_b32 v{JTV}, 0", f"v_mov_b32 v{JTD}, s{sNON}",
      "v_lshl_add_u32 v7, v4, 2, v5", "v_lshlrev_b32 v7, 5, v7", "v_lshl_add_u32 v7, v6, 3, v7", f"v_add_u32 v{JTR}, s62, v7")
    p("v_add_u32 v7, 24, v1", "v_min_u32 v7, 79, v7", "s_lshl_b32 s46, s45, 4", "s_add_u32 s46, s46, 128", "v_add_u32 v8, s46, v1",
      "v_cmp_gt_u32 vcc, 16, v1", f"s_mov_b32 s46, {WS_FP}", "v_cndmask_b32 v7, v7, v8, vcc", "v_lshlrev_b32 v7, 7, v7")
    p(ST("a8"))
    poll(p, f"{name}_pb", [(8, 7, "s46")], sleep=PSL2)
    p(ST("pb"))
    def h_load(s, q):
        so = "0" if s < 4 else f"s{sH4 + s//4 - 1}"
        return f"buffer_load_dwordx4 {ar(((s%8)*4+q)*4,4)}, v{HV+q}, {sr(SH,4)}, {so} offen offset:{(s%4)*1024} sc1"
    for s in range(LEAD):
        for q in range(4): p.vmem(h_load(s, q), f"H{s}_{q}")
        if s == 0: p("s_barrier")
    def w_reads(s):
        w = s // 2; base = w * 16384 + (s % 2) * 8192; st = base >> 16; base &= 0xffff
        par = s & 1
        return [f"ds_read_b64_tr_b16 {ar(VF+32*par+4*T+2*rd,2)}, v{WA+4*st+T//2} offset:{base + rd*1024 + (T&1)*8}" for T in range(8) for rd in range(2)]
    p(w_reads(0))
    p(f"s_waitcnt vmcnt({p.vmwait_n(['H0_0'])}) lgkmcnt(0)")
    mf = []; tasks = []
    bars = {7: "", 13: "", 17: ",K0", 19: ",V0"}
    dmas = {8: ("K", 0), 10: ("K", 1), 12: ("K", 2), 13: ("V", 0), 15: ("V", 1), 17: ("V", 2)}
    for i_, w_ in enumerate(range(NE, 10)):
        dmas[i_ + 1] = ("W", w_)
        bs = max(b_ for b_ in bars if b_ <= 2*w_ - 1)
        assert bs > i_ + 2
        bars[bs] += f",W{w_}"
    for s in range(20):
        b = 32 * s
        for q in range(4):
            for T in range(8):
                d = vr(ACC + 32*q + 4*T, 4)
                mf.append(f"{MM} {d}, {ar(VF+32*(s&1)+4*T,4)}, {ar(((s%8)*4+q)*4,4)}, {d if s else 0}")
        for q in range(4):
            ns, nq = (s, q+1) if q < 3 else (s+1, 0)
            if ns < 20:
                lg = " lgkm" if q == 3 else ""
                tags = f"H{ns}_{nq}"
                if q == 3 and ns in bars:
                    tasks.append(Task(f"WAITVM {tags}{bars[ns]}{lg}", "s", lo=b+8*q+6, hi=b+8*q+6))
                    tasks.append(Task("s_barrier", "s", lo=b+8*q+7, hi=b+8*q+7))
                else:
                    tasks.append(Task(f"WAITVM {tags}{lg}", "s", lo=b+8*q+7, hi=b+8*q+7))
        for x in ST(f"q{s}"): tasks.append(Task(x, "s", lo=b, hi=b+4))
        rd = w_reads(s+1) if s < 19 else v_reads(0)
        if s == 17: rd = rd + k_reads(0)
        if s == 18: rd = rd + k_reads(1)
        prev = None
        for x in rd:
            t = Task(x, "ds", lo=b, hi=b+27, after=[prev] if prev else []); tasks.append(t); prev = t
        for q in range(4):
            if s + LEAD < 20:
                tasks.append(Task(h_load(s+LEAD, q), "vm", lo=b+8*q+1, hi=b+8*q+1, tag=f"H{s+LEAD}_{q}"))
            if s >= 12:
                for i in range(4):
                    tasks.append(Task(f"v_accvgpr_write_b32 a{((s%8)*4+q)*4+i}, 0", "a", lo=b+8*q+7, hi=b+8*q+60))
        if s in dmas:
            kind, tl = dmas[s]
            if kind == "W": dm = (f"s_add_u32 m0, s{sWOFF}, {tl*16384}", f"s_mov_b32 s47, {tl*524288}", wq_dma(tl))
            else: dm = (f"s_add_u32 m0, s{sWOFF}, {tl*16384 + (VBASE if kind == 'V' else 0)}", f"s_mov_b32 s47, {tl*16384}", kv_dma(SK if kind == "K" else SV, "s47"))
            tasks += [Task(dm[0], "s", lo=b+2, hi=b+2), Task(dm[1], "s", lo=b+3, hi=b+3)]
            for i, x in enumerate(dm[2]): tasks.append(Task(x, "vm", lo=b+8*i+5, hi=b+8*i+5, tag=f"{kind}{tl}"))
    b = len(mf)
    for q in range(4):
        for t in range(4):
            for j in range(4):
                a = ACC + 32*q + 8*t + 2*j
                tasks.append(Task(f"v_cvt_pk_bf16_f32 v{Q0+16*q+4*t+j}, v{a}, v{a+1}", "a", lo=b-32+8*q+7+4, hi=b+8*q-2 if q else b-3))
    for q in range(4): mf += qk_mfmas(0, q, first=True)
    tasks.append(Task("s_waitcnt lgkmcnt(0)", "s", lo=b-1, hi=b-1))
    lastcvt = [t for t in tasks if t.text.startswith("v_cvt_pk_bf16_f32")]
    chain_end = {}
    for q in range(4):
        t0 = X0 + 2*q; t1 = t0 + 1
        seq = [f"v_max3_f32 v{t0}, {S(q,0)}, {S(q,1)}, {S(q,2)}", f"v_max3_f32 v{t0}, v{t0}, {S(q,3)}, {S(q,4)}",
               f"v_max3_f32 v{t0}, v{t0}, {S(q,5)}, {S(q,6)}", f"v_max_f32 v{t0}, v{t0}, {S(q,7)}"] + xmax(t0, t1)
        prev = None
        for x in seq:
            t = Task(x, "a", lo=b+8*q+7+4, hi=b+40, after=([prev] if prev else []) + lastcvt); tasks.append(t); prev = t
        subs = []
        for i in range(8):
            t = Task(f"v_sub_f32 {S(q,i)}, {S(q,i)}, v{t0}", "a", hi=b+50, after=[prev]); tasks.append(t); subs.append(t)
        for i in range(4): tasks.append(Task(f"v_sub_f32 v{NM(q)+i}, 0, v{t0}", "a", after=[prev]))
        chain_end[q] = subs
    for i in range(16): tasks.append(Task(f"v_mov_b32 v{L(1,0)+i}, 0", "a", lo=b, after=lastcvt))
    for i in range(4): tasks.append(Task(f"v_mov_b32 v{JD+i}, 0", "a", lo=b, after=lastcvt))
    prevc = []
    for q in range(3):
        es = []
        for i in range(8):
            t = Task(exp_i(q, i), "e", after=[chain_end[q][i]] + prevc); tasks.append(t); es.append(t)
        prevc = []
        for i in range(4):
            t = Task(cvt_i(q, i), "a", after=[es[2*i], es[2*i+1]]); tasks.append(t); prevc.append(t)
    emit_sched(p, schedule(mf, tasks))
    p(ones_mfma(0, 0), ones_mfma(0, 1))
    p(f"s_mov_b32 s{sTILE}, {3*16384}", f"s_mov_b32 s{sCNT}, 0", "s_mov_b32 s16, 1280", "s_mov_b32 s17, 1", "s_mov_b32 s18, 128",
      "s_lshr_b32 s19, s2, 3", "s_lshl_b32 s19, s19, 2", f"s_add_u32 s19, s19, s{sWAVE}", "s_mul_i32 s19, s19, 40960", "s_and_b32 s20, s2, 1", "s_mul_i32 s20, s20, 20480",
      "s_add_u32 s19, s19, s20", f"s_add_u32 s19, s19, {WS_WOF if TW else OOB}")
    p(ST("qend"))
    p(f"s_waitcnt vmcnt({p.vmwait_n(['K1','V1'])}) lgkmcnt(0)", "s_barrier")
    pro = fix_hazards(p.lines)
    loop, sites, cut = attn_loop(name)
    p = Prog()
    p.label(f"{name}_tail")
    p(ST("tail"))
    import phases
    phases.tail_and_rest(p, name, sites, ST, stamp, NW_A, NW_B, NW4, NE3, EP, **kw)
    pre_ctx = [x for x in loop[:cut] if not (x.endswith(":") or x.startswith("."))][-24:]
    rest = fix_hazards(pre_ctx + p.lines)[len(pre_ctx):]
    bad = check_linear(pro + loop + loop, "main") + check_linear(loop[:cut] + rest, "tail")
    assert bad == 0
    p.lines = pro + loop + rest + rare_code(name, sites)
    return p.text(), dict(vgpr=512, acc=256, sgpr=102, lds=163840, grid=256, block=256)

def attn_loop(name):
    sites = []
    def unit(n, q):
        oq = (q + 2) % 4; opar = (n + 1) & 1 if q >= 2 else n & 1
        sq = (q + 3) % 4
        m = [ones_mfma(opar, oq)] + qk_mfmas((n + 1) & 1, q) + pv_mfmas(n & 1, q)
        sal = [[] for _ in range(17)]; lo = [[] for _ in range(17)]; va = [[] for _ in range(17)]
        site = len(sites); sites.append((opar, oq))
        cmp_ = f"v_cmp_lt_f32 vcc, s{sTHR}, v{L(opar,oq)}"
        br = [f"s_cbranch_vccnz {name}_rs{site}", f"{name}_rb{site}:"]
        if q < 3:
            rd = (v_reads(n+1) + k_reads(n+2))[8*q:8*q+8]
            eg = [0, 1, 4, 5, 8, 9, 13, 14]; dg = [2, 3, 6, 7, 10, 12, 15, 16]
            for i, g in enumerate(eg): va[g].append(exp_i(sq, i))
            for i, g in enumerate(dg): lo[g].append(rd[i])
            va[2].append(cvt_i(sq, 0)); va[6].append(cvt_i(sq, 1)); va[10].append(cvt_i(sq, 2)); va[15].append(cvt_i(sq, 3))
            va[7].append(cmp_); sal[11] += br
        else:
            tile_st = ((n // 2) + 3) % 4
            isv = n & 1
            dm = kv_dma(SV if isv else SK, f"s{sTILE}")
            sal[0].append(f"s_add_u32 m0, s{sWOFF}, {tile_st*16384 + (VBASE if isv else 0)}")
            eg = [0, 2, 4, 6, 9, 10, 11, 12]
            for i, g in enumerate(eg): va[g].append(exp_i(sq, i))
            for i, g in enumerate([1, 3, 5, 7]): lo[g].append(dm[i])
            va[8] += [cmp_, cvt_i(sq, 0)]
            va[13] += [cvt_i(sq, 1)]; sal[13] += br
            va[14] += [cvt_i(sq, 2), cvt_i(sq, 3)]
            if isv:
                sal[9].append(f"s_add_u32 s{sTILE}, s{sTILE}, 16384")
                sal[14].append(f"WAIT {n}"); sal[15].append("s_barrier")
            else:
                sal[14].append("s_waitcnt lgkmcnt(0)")
            if n == 6:
                sal[10].append(f"s_add_u32 s{sCNT}, s{sCNT}, 1"); sal[11].append(f"s_cmp_eq_u32 s{sCNT}, 8")
            if n == 0:
                sal[12].append("s_mov_b32 m0, s62")
                lo[15].append(f"buffer_load_dwordx4 v{JVA}, s[48:51], s56 offen nt lds ;J")
                lo[16].append(f"buffer_load_dwordx4 {vr(JCS,4)}, v{JL16}, {WS}, s58 offen sc1 ;J")
            if n == 1:
                sal[12].append("s_add_u32 m0, s62, 1024")
                lo[15].append(f"buffer_load_dwordx4 v{JVB}, s[96:99], s61 offen lds ;J")
                lo[16].append(f"buffer_store_dword v{JTD}, v{JTV}, {WS}, s100 offen sc1")
            if n in (4, 5):
                f = JFA if n == 4 else JFB
                lo[15].append(f"ds_read_b64_tr_b16 {vr(f,2)}, v{JTR} offset:{(n-4)*1024}")
                lo[16].append(f"ds_read_b64_tr_b16 {vr(f+2,2)}, v{JTR} offset:{(n-4)*1024 + 512}")
            if n == 6:
                lo[15].append(f"buffer_store_dwordx4 {vr(JFA,4)}, v{JL16}, {WS}, s57 offen sc1")
                lo[16].append(f"buffer_store_dwordx4 {vr(JFB,4)}, v{JL16}, {WS}, s63 offen sc1")
                va[16].append(f"{MM} {vr(JD,4)}, {vr(JFA,4)}, {vr(JCS,4)}, {vr(JD,4)}")
        if n == 0 and q == 0:
            va[3].append(f"v_mad_u32_u24 v{JVA}, v{JROW}, s59, v{JC16}")
            va[12].append(f"v_mul_u32_u24 v{JVB}, s16, v{JROW}")
            va[16].append(f"v_mad_u32_u24 v{JVB}, v{JC16}, s17, v{JVB}")
        if n == 7 and q == 0:
            upd = ["s_add_u32 s56, s56, s94", "s_add_u32 s57, s57, s95", "s_add_u32 s58, s58, 1024", "s_add_u32 s61, s61, s18", "s_add_u32 s63, s63, 4096",
                   f"s_cmp_eq_u32 s{sCNT}, 5", f"s_cselect_b32 s100, s101, {OOB}"]
            for i, x in enumerate(upd): sal[i].append(x)
        if n == 7 and q == 1:
            upd = [f"s_cmp_eq_u32 s{sCNT}, 5", "s_cselect_b32 s48, s92, s48", "s_cselect_b32 s49, s93, s49", "s_cselect_b32 s56, s90, s56", "s_cselect_b32 s57, s91, s57",
                   f"s_cselect_b32 s58, {OOB}, s58", "s_cselect_b32 s59, 1280, s59", f"s_cselect_b32 s94, {18*40960}, s94", f"s_cselect_b32 s95, {18*40960}, s95",
                   f"s_cselect_b32 s61, s19, s61", f"s_cselect_b32 s63, {OOB}, s63"]
            for i, x in enumerate(upd): sal[i].append(x)
        if n == 7 and q == 2:
            upd = [f"s_cmp_eq_u32 s{sCNT}, 5", "s_cselect_b32 s96, s52, s96", "s_cselect_b32 s97, s53, s97", "s_cselect_b32 s98, s54, s98",
                   "s_cselect_b32 s16, 256, s16", "s_cselect_b32 s17, 8, s17", "s_cselect_b32 s18, 6144, s18"]
            for i, x in enumerate(upd): sal[i].append(x)
        out = []
        for g in range(17):
            out.append(m[g]); out += sal[g] + lo[g] + va[g]
        return out
    loop = [".p2align 6", f"{name}_loop:"]
    for n in range(8):
        loop.append(f";STEP {n}")
        for q in range(4): loop += unit(n, q)
        if n == 6: loop.append(f"s_cbranch_scc1 {name}_tail")
    loop.append(f"s_branch {name}_loop")
    res = []; vmseq = []
    for rep in range(2):
        cur = 0
        for x in loop:
            if x.startswith(";STEP"): cur = int(x.split()[1])
            elif x.startswith("buffer_"): vmseq.append((rep*8 + cur, "store" in x or ";J" in x))
            elif x.startswith("WAIT") and rep == 1:
                lim = 8 + cur - 2
                last = max(i for i, (st_, side) in enumerate(vmseq) if st_ <= lim and not side)
                res.append(len(vmseq) - 1 - last)
    it = iter(res)
    loop = [f"s_waitcnt vmcnt({next(it)}) lgkmcnt(0)" if x.startswith("WAIT") else x.replace(" ;J", "") for x in loop if not x.startswith(";STEP")]
    cut = loop.index(f"s_cbranch_scc1 {name}_tail")
    return loop, sites, cut

def rare_code(name, sites):
    rare = []
    for i, (par, q) in enumerate(sites):
        rare += [f"{name}_rs{i}:", f"s_call_b64 {sr(sRET,2)}, {name}_rare{par}{q}", f"s_branch {name}_rb{i}"]
    for par in range(2):
        for q in range(4):
            t0, t1, sc = X0 + 10, X0 + 11, X0 + 12
            r = ["s_nop 15", f"v_max3_f32 v{t0}, {S(q,0)}, {S(q,1)}, {S(q,2)}", f"v_max3_f32 v{t0}, v{t0}, {S(q,3)}, {S(q,4)}",
                 f"v_max3_f32 v{t0}, v{t0}, {S(q,5)}, {S(q,6)}", f"v_max3_f32 v{t0}, v{t0}, {S(q,7)}, 0"] + xmax(t0, t1)
            r += [f"v_exp_f32_e64 v{sc}, -v{t0}"]
            r += [f"v_sub_f32 {S(q,i)}, {S(q,i)}, v{t0}" for i in range(8)]
            r += [f"v_sub_f32 v{NM(q)+i}, v{NM(q)+i}, v{t0}" for i in range(4)]
            r += [f"v_mul_f32 v{L(1-par,q)+i}, v{L(1-par,q)+i}, v{sc}" for i in range(4)]
            for i in range(32):
                r += [f"v_accvgpr_read_b32 v{t1}, a{O0+32*q+i}", f"v_mul_f32 v{t1}, v{t1}, v{sc}", f"v_accvgpr_write_b32 a{O0+32*q+i}, v{t1}"]
            for i in range(4):
                r += [f"v_exp_f32 v{X0+13}, {S(q,2*i)}", f"v_exp_f32 v{X0+14}, {S(q,2*i+1)}", f"v_cvt_pk_bf16_f32 v{P(q)+i}, v{X0+13}, v{X0+14}"]
            r += [ones_mfma(par, q), "s_nop 15", f"s_setpc_b64 {sr(sRET,2)}"]
            rare += [f"{name}_rare{par}{q}:"] + fix_hazards(r)
    return rare
```

```python
from asmlib import *
from sched import *
from layout import *
from k1 import srd, f32
from k2 import *
import mega
from mega import WS, OOB, sNON, poll, check, set_flag, early_poll

EXCH = 102400
L16, G16 = 5, 6
AV = 10
SA_, SW_, SX_, SY_, SHH = 8, 12, 16, 20, 24
sCT, sRT, sCT4, sRT4 = 56, 57, 58, 59
sK4 = 44
sPAR, sNB4, sPAR4 = 95, 96, 97
AV2 = 232

def groups(spec):
    out = []
    for t, lo, hi in spec:
        out += [vr(r, 4, t) for r in range(lo, hi, 4)]
    return out

def interleave(main, extra, every):
    out = []; k = 0
    for i, x in enumerate(main):
        out.append(x)
        if (i + 1) % every == 0 and k < len(extra):
            out.append(extra[k]); k += 1
    return out, extra[k:]

def emit(p, seq):
    for x in seq:
        if isinstance(x, tuple):
            for y in x[1:-1]: p(y)
            p.vmem(x[-1], x[0])
        elif x.startswith("buffer_"): p.vmem(x, "X")
        else: p(x)

class Skinny:
    def __init__(self, k3, wgroups, wv, acc, aring, acct='a', at='v'):
        self.acct = acct; self.at = at; self.sw = SW_ if k3 else SX_; self.ws0 = 40 if k3 else 34
        self.k3 = k3; self.NS = 32 if k3 else 14; self.KST = 128 if k3 else 54
        self.wg = wgroups; self.DW = len(wgroups) // 5; self.wv = wv; self.acc = acc; self.aring = aring; self.DA = 4
    def setup_a(self, av=AV):
        NS, KST = self.NS, self.KST
        self.av = av
        out = [f"v_mul_u32_u24 v7, {NS*1024}, v2", f"v_add_u32 v7, v7, v{L16}"]
        for i in range(4):
            out += [f"v_add_u32 v8, {i}, v2", "v_and_b32 v8, 3, v8", f"v_mul_u32_u24 v8, {KST*1024}, v8", f"v_add_u32 v{av+i}, v8, v7"]
        if not self.k3:
            out += [f"v_lshrrev_b32 v8, 1, v{L16}"] + [f"v_sub_u32 v{AV2+i}, v{av+i}, v8" for i in range(4)]
        out += [f"s_mul_i32 s39, s{sRT}, {4*KST*1024}", f"s_add_u32 s38, s39, {WS_AO if self.k3 else WS_HH}",
                f"s_add_u32 s{SA_}, s42, s38", f"s_addc_u32 s{SA_+1}, s43, 0", f"s_sub_u32 s{SA_+2}, {128*KST*1024}, s39", f"s_mov_b32 s{SA_+3}, 0x20000"]
        return out
    def setup_w(self):
        NS, KST, sw = self.NS, self.KST, self.sw
        return [f"v_mul_u32_u24 v7, {NS*40960}, v2", f"v_add_u32 v7, v7, v{L16}", f"s_lshl_b32 s39, s{sPAR}, 10", f"v_add_u32 v{self.wv}, s39, v7",
                f"s_lshl_b32 s39, s{sNB4}, 10", f"v_add_u32 v{self.wv+1}, s39, v7",
                f"s_mul_i32 s39, s{sCT}, 5120", f"s_add_u32 s38, s39, {WS_WOF if self.k3 else WS_WDF}", f"s_sub_u32 s{sw+2}, {KST*40960}, s39", f"s_mov_b32 s{sw+3}, 0x20000",
                f"s_add_u32 s{sw}, s42, s38 !! s_addc_u32 s{sw+1}, s43, 0"]
    def setup(self):
        out = []
        for x in self.setup_a() + self.setup_w(): out += x.split(" !! ")
        return out
    def wreg(self, s, nb): return self.wg[(s % self.DW)*5 + nb]
    def wset(self, s): return f"s_mov_b32 s{self.ws0 + (s&1)}, {s*40960}"
    def wload(self, s, nb):
        return f"buffer_load_dwordx4 {self.wreg(s,nb)}, v{self.wv + nb//4}, {sr(self.sw,4)}, s{self.ws0 + (s&1)} offen offset:{(nb%4)*1024} sc1"
    def preload(self):
        out = []
        for s in range(min(self.DW, self.NS)):
            for nb in range(5):
                out.append((f"W{s}", self.wset(s), self.wload(s, nb)) if nb == 0 else (f"W{s}", self.wload(s, nb)))
        return out
    def areg(self, s, i): return vr(self.aring + 16*(s % self.DA) + 4*i, 4, self.at)
    def aload(self, s, i):
        return f"buffer_load_dwordx4 {self.areg(s,i)}, v{self.av+i}, {sr(SA_,4)}, s{sK4 + s//4} offen offset:{(s%4)*1024} sc1"
    def aloads(self, s):
        if not self.k3 and s % 7 == 3:
            r = lambda i: self.aring + 16*(s % self.DA) + 4*i
            return [f"buffer_load_dwordx2 {vr(r(i)+2*h,2,self.at)}, v{AV2+i}, {sr(SA_,4)}, s{sK4 + s//4} offen offset:{(s%4)*1024 + 512*h} sc1" for i in range(4) for h in range(2)]
        return [self.aload(s, i) for i in range(4)]
    def main(self, p, extra, extra_from, mid=None, extra2=None):
        NS, DA, DW = self.NS, self.DA, self.DW
        for s in range(DA - 1):
            for x in self.aloads(s): p.vmem(x, f"A{s}")
        p(f"s_waitcnt vmcnt({p.vmwait_n(['A0'])})")
        mf = []; tasks = []
        for s in range(NS):
            b = 20 * s
            for x in self.ST(f"{'m' if self.k3 else 'n'}{s}"): tasks.append(Task(x, "s", lo=b+10, hi=b+18))
            for i in range(4):
                for nb in range(5):
                    d = vr(self.acc + 20*i + 4*nb, 4, self.acct)
                    mf.append(f"{MM} {d}, {self.wreg(s,nb)}, {self.areg(s,i)}, {d if s else 0}")
            vm = []
            n = s + DA - 1
            if n < NS: vm += [(x, f"A{n}") for x in self.aloads(n)]
            n = s - 1 + DW
            if s >= 1 and n < NS:
                tasks.append(Task(self.wset(n), "s", lo=b, hi=b))
                vm += [(self.wload(n, nb), f"W{n}") for nb in range(5)]
            if mid and s == mid[0]: vm += [(x, "M") for x in mid[1]]
            if extra2 and s == extra2[0]: vm += [(x, "E") for x in extra2[1]]
            if s == extra_from:
                vm += [(x, "E") for x in extra]; extra = []
            assert len(vm) <= 9, len(vm)
            for i, (x, tg) in enumerate(vm):
                tasks.append(Task(x, "vm", lo=b+1+2*i, hi=b+1+2*i, tag=tg))
            if s + 1 < NS:
                tg = f"A{s+1}" + (f",W{s+1}" if s + 1 >= DW else "")
                tasks.append(Task(f"WAITVM {tg}", "s", lo=b+19, hi=b+19))
        assert not extra
        emit_sched(p, schedule(mf, tasks))
    def exchange_out(self, T):
        out = []
        for i in range(1, 4):
            out += [f"s_add_u32 s39, s{sWAVE}, {i}", "s_and_b32 s39, s39, 3", "s_mul_i32 s39, s39, 15360", f"s_add_u32 s39, s39, {EXCH + (i-1)*5120}", f"v_add_u32 v9, s39, v{L16}"]
            out += [f"ds_write_b128 v9, {vr(self.acc+20*i+4*nb,4,self.acct)} offset:{nb*1024}" for nb in range(5)]
        if self.acct == "a": out += [f"v_accvgpr_read_b32 v{T+j}, a{self.acc+j}" for j in range(20)]
        out += [f"s_mul_i32 s39, s{sWAVE}, 15360", f"s_add_u32 s39, s39, {EXCH}", f"v_add_u32 v9, s39, v{L16}"]
        return out
    def exchange_in(self, T, R0, U0, XR, G0):
        out = [f"ds_read_b128 {vr(R0+4*j,4)}, v9 offset:{j*1024}" for j in range(15)]
        for j in range(10): out += [f"v_lshlrev_b32 v{U0+2*j}, 16, v{XR+j}", f"v_and_b32 v{U0+2*j+1}, 0xffff0000, v{XR+j}"]
        for i in range(3):
            out.append(f"s_waitcnt lgkmcnt({10 - 5*i})")
            out += [f"v_pk_add_f32 {vr(T+j,2)}, {vr(T+j,2)}, {vr(R0+20*i+j,2)}" for j in range(0, 20, 2)]
        out += [f"v_pk_fma_f32 {vr(T+j,2)}, {vr(T+j,2)}, {vr(G0+j,2)}, {vr(U0+j,2)}" for j in range(0, 20, 2)]
        out += [f"v_cvt_pk_bf16_f32 v{XR+j}, v{T+2*j}, v{T+2*j+1}" for j in range(10)]
        return out

def wave_flag(p, tag, soff):
    p(f"v_mov_b32 v8, s{sNON}", "v_mov_b32 v9, 0", f"s_waitcnt vmcnt({p.vmwait_n([tag])})")
    p.vmem(f"buffer_store_dword v8, v9, {WS}, {soff} offen sc1", "FL")

def tail_and_rest(p, name, sites, ST, stamp, NW_A, NW_B, NW4=0, NE3=0, EP=(0, 0, 0), NB2=7, NB3=4, W4R=8, LEAD3=4):
    s2 = len(sites); sites.append((1, 2)); s3 = len(sites); sites.append((1, 3))
    pv = [pv_mfmas(1, q) for q in range(4)]
    coords = [f"s_bfe_u32 s38, s2, 0x20003", "s_and_b32 s39, s2, 1", "s_lshl_b32 s39, s39, 2", f"s_add_u32 s{sCT}, s39, s38",
              "s_bfe_u32 s39, s2, 0x20001", "s_lshl_b32 s39, s39, 3", "s_lshr_b32 s37, s2, 5", f"s_add_u32 s{sRT}, s39, s37",
              "s_and_b32 s39, s2, 3", "s_lshl_b32 s39, s39, 2", f"s_add_u32 s{sCT4}, s39, s38",
              "s_bfe_u32 s39, s2, 0x10002", "s_lshl_b32 s39, s39, 3", f"s_add_u32 s{sRT4}, s39, s37",
              f"s_and_b32 s{sPAR}, s38, 1", f"s_cselect_b32 s{sNB4}, 0, 4"]
    P2 = Skinny(True, groups([("a", 128, 256), ("v", 80, 144), ("a", 0, 48), ("v", 144, 224)]), 248, 48, 16)
    P2.ST = ST
    p(ones_mfma(1, 2), "s_and_b32 s38, s2, 1", "v_lshlrev_b32 v7, 7, v1", pv[0][0], "s_lshl_b32 s38, s38, 6", exp_i(3, 0),
      pv[0][1], f"s_add_u32 s36, s38, {WS_F0}", exp_i(3, 1), pv[0][2], "s_add_u32 s61, s36, 8192", f"buffer_load_dword v14, v7, {WS}, s36 offen sc1",
      pv[0][3], f"buffer_load_dword v15, v7, {WS}, s61 offen sc1")
    for i in range(4, 8): p(pv[0][i], exp_i(3, i - 2))
    p(pv[1][0], exp_i(3, 6), pv[1][1], exp_i(3, 7), pv[1][2], cvt_i(3, 0), cvt_i(3, 1), pv[1][3], cvt_i(3, 2), cvt_i(3, 3),
      pv[1][4], f"v_cmp_lt_f32 vcc, s{sTHR}, v{L(1,2)}", f"v_mov_b32 v{L16}, v{JL16}", ones_mfma(1, 3), f"v_lshlrev_b32 v{G16}, 4, v4", pv[1][5], pv[1][6], pv[1][7],
      f"s_cbranch_vccnz {name}_rs{s2}")
    p.label(f"{name}_rb{s2}")
    def norm(q):
        r = X0 + 8
        out = [f"s_mov_b32 s46, {q*131072}", f"v_rcp_f32 v{r}, v{L(1,q)}"]
        for tt in range(4):
            base = Q0 + 16*q + 8*(tt & 1)
            out += [f"v_accvgpr_read_b32 v{base+i}, a{O0+32*q+8*tt+i}" for i in range(8)]
            if q == 0: out += [f"v_mul_f32 v{base+i}, v{base+i}, v{r}" for i in range(8)]
            else: out += [f"v_pk_mul_f32 {vr(base+i,2)}, {vr(base+i,2)}, {vr(r,2)} op_sel_hi:[1,0]" for i in range(0, 8, 2)]
            dst = T0 + 4*(tt & 1)
            out += [f"v_cvt_pk_bf16_f32 v{dst+i}, v{base+2*i}, v{base+2*i+1}" for i in range(4)]
            out.append(("AO", f"buffer_store_dwordx4 {vr(dst,4)}, v{OV}, {sr(SO,4)}, s46 offen offset:{tt*1024} sc1"))
        return out
    fill = norm(0); k = 0
    seq = [pv[2][0], coords[0], pv[2][1], coords[1], f"v_cmp_lt_f32 vcc, s{sTHR}, v{L(1,3)}"]
    for i in range(2, 8):
        seq += [pv[2][i], coords[i]] + fill[k:k+2]; k += 2
    emit(p, seq)
    p(f"s_cbranch_vccnz {name}_rs{s3}"); p.label(f"{name}_rb{s3}")
    seq = []
    for i in range(8):
        seq += [pv[3][i]] + coords[8+i:9+i] + fill[k:k+2]; k += 2
    seq += fill[k:]
    emit(p, seq)
    U = KA
    p("v_lshlrev_b32 v8, 4, v0", "v_add_u32 v8, 0x25000, v8", f"ds_write_b128 v8, {vr(JD,4)}")
    p("s_waitcnt vmcnt(4)")
    check(p, [14, 15])
    p(f"s_cbranch_vccz {name}_f0_ok")
    vm_save = list(p.vm)
    poll(p, f"{name}_f0", [(14, 7, "s36"), (15, 7, "s61")])
    p.vm = vm_save
    p(P2.setup())
    for j in range(8):
        if sK4 + j != 46: p(f"s_mov_b32 s{sK4+j}, {4096*j}")
    p("s_waitcnt lgkmcnt(0)", "s_barrier")
    pre = P2.preload()
    body = norm(1) + [f"v_add_u32 v8, 0x25000, v{L16}"] + [f"ds_read_b128 {vr(U+4*w,4)}, v8 offset:{w*1024}" for w in range(4)] + norm(2) + ["s_waitcnt lgkmcnt(0)"]
    for i in (0, 2): body += [f"v_pk_add_f32 {vr(U+i,2)}, {vr(U+i,2)}, {vr(U+4+i,2)}", f"v_pk_add_f32 {vr(U+8+i,2)}, {vr(U+8+i,2)}, {vr(U+12+i,2)}"]
    for i in (0, 2): body += [f"v_pk_add_f32 {vr(U+i,2)}, {vr(U+i,2)}, {vr(U+8+i,2)}"]
    body += ["v_mul_u32_u24 v8, 13824, v3", f"v_add_u32 v8, v8, v{G16}", "v_and_b32 v9, 0xce, v0", "v_cmp_eq_u32 vcc, 0, v9", f"v_mov_b32 v9, {OOB}",
             "v_cndmask_b32 v8, v9, v8, vcc", "s_lshl_b32 s61, s60, 6", f"s_add_u32 s61, s61, {WS_UW}",
             ("AO", f"buffer_store_dwordx4 {vr(U,4)}, v8, {WS}, s61 offen sc1")] + norm(3)
    assert NW_A <= 48
    if NW_A:
        seq, left = interleave(body, pre[:NW_A], max(1, len(body) // NW_A))
        emit(p, seq); pre = left + pre[NW_A:]
    else: emit(p, body)
    p(ST("norm"))
    p("s_mov_b32 s46, 8192")
    emit(p, pre[:NW_B]); pre = pre[NW_B:]
    p("s_lshr_b32 s36, s2, 5", "s_lshl_b32 s36, s36, 2", f"s_add_u32 s36, s36, s{sWAVE}", "s_lshl_b32 s36, s36, 5", "s_and_b32 s38, s2, 7", "s_lshl_b32 s38, s38, 2", "s_add_u32 s36, s36, s38",
      "s_bfe_u32 s38, s2, 0x20003", "s_add_u32 s36, s36, s38", "s_lshl_b32 s36, s36, 7", f"s_add_u32 s36, s36, {WS_G1}")
    G0, C0, XR = 80, 100, 224
    T, U0, R0 = 16, 36, 144
    RM = 250
    srd(p, SX_, 4, 5, 2621440)
    p(f"s_mul_i32 s39, s{sCT}, 320", f"s_add_u32 s60, s39, {WS_MOD + 2*2560}", f"s_add_u32 s61, s39, {WS_MOD + 4*2560}", f"s_add_u32 s62, s39, {WS_MOD + 5*2560}",
      "v_lshl_add_u32 v8, v2, 4, v3", "v_mul_u32_u24 v8, 1280, v8", f"v_lshl_add_u32 v{RM}, v4, 3, v8",
      f"s_mul_i32 s63, s{sRT}, 81920", f"s_mul_i32 s39, s{sCT}, 160", "s_add_u32 s63, s63, s39",
      f"s_lshl_b32 s39, s{sNB4}, 6", "s_add_u32 s98, s60, s39", "s_add_u32 s99, s61, s39", "s_add_u32 s100, s62, s39", f"s_lshl_b32 s39, s{sNB4}, 5", "s_add_u32 s101, s63, s39",
      f"s_lshl_b32 s39, s{sPAR}, 6", "s_add_u32 s60, s60, s39", "s_add_u32 s61, s61, s39", "s_add_u32 s62, s62, s39", f"s_lshl_b32 s39, s{sPAR}, 5", "s_add_u32 s63, s63, s39",
      "v_lshlrev_b32 v255, 7, v1", f"s_mov_b32 s90, {WS_F1}", f"s_mov_b32 s91, {WS_F1+8192}", f"s_mov_b32 s92, {WS_F1+16384}", f"s_mov_b32 s93, {WS_F1+24576}",
      "s_load_dwordx2 s[6:7], s[0:1], 88")
    wave_flag(p, "AO", "s36")
    p("s_lshl_b32 s36, s2, 7", f"s_add_u32 s36, s36, {WS_F1}", "s_barrier")
    set_flag(p, f"{name}_sf1", "s36")
    p(ST("pub1"))
    xl = [("XL", f"buffer_load_dwordx2 {vr(XR+2*nb,2)}, v{RM}, {sr(SX_,4)}, s{63 if nb < 4 else 101} offen offset:{32*(nb%4)}") for nb in range(5)]
    p("v_and_b32 v7, 7, v1", "v_lshlrev_b32 v7, 7, v7", f"s_lshl_b32 s36, s{sRT}, 2", f"s_add_u32 s36, s36, s{sWAVE}", "s_lshl_b32 s36, s36, 10", f"s_add_u32 s36, s36, {WS_G1}")
    early_poll(p, f"{name}_p1", (14, 7, "s36"), pre + xl, EP[0], emit)
    p(ST("p1"))
    extra = []
    for nb in range(5):
        o = 38 if nb == 4 else 0
        extra += [f"buffer_load_dwordx4 {vr(G0+4*nb,4)}, v{G16}, {WS}, s{60+o} offen offset:{64*(nb%4)} sc1",
                  f"buffer_load_dwordx4 {vr(C0+4*nb,4)}, v{G16}, {WS}, s{61+o} offen offset:{64*(nb%4)} sc1"]
    P2.main(p, extra[:5], 27, mid=(20, [f"buffer_load_dword v{234+j}, v255, {WS}, s{90+j} offen sc1" for j in range(4)]), extra2=(26, extra[5:]))
    p(ST("p2end"))
    p(P2.exchange_out(T))
    SLOT = 28672; R = 5
    DV3, RA1, RA2, YV, SV3 = 248, 251, 254, 252, 14
    WF3, UW3, STT, BF3, BD, AC3 = 0, 128, 240, 112, 6, 16
    p("v_mul_u32_u24 v7, 7168, v2", f"v_add_u32 v{DV3}, v7, v{L16}", f"v_add_u32 v{DV3+1}, 4096, v{DV3}", f"s_mul_i32 s37, s{sWAVE}, 7168",
      f"s_mul_i32 s39, s{sCT4}, 286720", f"s_add_u32 s39, s39, {WS_GUF}",
      f"s_add_u32 s{SW_}, s42, s39", f"s_addc_u32 s{SW_+1}, s43, 0", f"s_mov_b32 s{SW_+2}, 286720", f"s_mov_b32 s{SW_+3}, 0x20000")
    def dma3(st):
        out = []
        for t in range(7):
            pre_ = []
            if t == 0: pre_.append(f"s_mov_b32 s41, {st*SLOT}")
            if t % 4 == 0: pre_.append(f"s_add_u32 m0, s37, {(st % R)*SLOT + t*1024}")
            out.append((f"W{st}", *pre_, f"buffer_load_dwordx4 v{DV3+t//4}, {sr(SW_,4)}, s41 offen offset:{(t%4)*1024} sc1 lds"))
        return out
    p("s_waitcnt vmcnt(0)")
    check(p, [234, 235, 236, 237])
    p(f"s_cbranch_vccz {name}_f1_ok")
    poll(p, f"{name}_f1", [(234+j, 255, f"s{90+j}") for j in range(4)])
    p("s_waitcnt lgkmcnt(0)", "s_barrier")
    p(ST("x2"))
    body = P2.exchange_in(T, R0, U0, XR, G0)
    for j in range(10): body += [f"v_lshlrev_b32 v{T+2*j}, 16, v{XR+j}", f"v_and_b32 v{T+2*j+1}, 0xffff0000, v{XR+j}"]
    body += [f"v_pk_mul_f32 {vr(T+j,2)}, {vr(T+j,2)}, {vr(C0+j,2)}" for j in range(0, 20, 2)]
    body += [f"v_cvt_pk_bf16_f32 v{R0+j}, v{T+2*j}, v{T+2*j+1}" for j in range(10)]
    body += [f"s_lshl_b32 s38, s{sRT}, 2", f"s_add_u32 s38, s38, s{sWAVE}", "s_mul_i32 s38, s38, 20480", f"s_add_u32 s38, s38, {WS_Y}",
             f"s_lshr_b32 s39, s{sCT}, 1", "s_mul_i32 s39, s39, 5120", "s_add_u32 s38, s38, s39",
             f"s_mul_i32 s39, s{sPAR}, 3072", "s_add_u32 s36, s38, s39", f"s_lshl_b32 s39, s{sPAR}, 9", "s_add_u32 s38, s38, s39", f"v_lshrrev_b32 v7, 1, v{L16}",
             ("Y", f"buffer_store_dwordx4 {vr(R0,4)}, v{L16}, {WS}, s36 offen sc1"), ("Y", f"buffer_store_dwordx4 {vr(R0+4,4)}, v{L16}, {WS}, s36 offen offset:1024 sc1"),
             ("Y", f"buffer_store_dwordx2 {vr(R0+8,2)}, v7, {WS}, s38 offen offset:2048 sc1")]
    body += ["v_mov_b32 v7, 0x3f803f80"]
    for j in range(10):
        body += [f"v_dot2_f32_bf16 v8, v{XR+j}, v7, {'v8' if j else 0}", f"v_dot2_f32_bf16 v9, v{XR+j}, v{XR+j}, {'v9' if j else 0}"]
    body += [f"v_accvgpr_write_b32 a{240+j}, v{XR+j}" for j in range(10)]
    body += ["v_permlane32_swap_b32 v8, v9", "v_add_f32 v8, v8, v9", "v_mov_b32 v9, v8", "v_permlane16_swap_b32 v8, v9", "v_add_f32 v8, v8, v9",
             "v_lshl_add_u32 v9, v2, 4, v3", "v_lshlrev_b32 v9, 3, v9", "v_lshrrev_b32 v7, 5, v1", "v_lshl_add_u32 v9, v7, 2, v9",
             f"s_lshl_b32 s38, s{sRT}, 12", f"s_lshl_b32 s39, s{sCT}, 9", "s_add_u32 s38, s38, s39", f"s_add_u32 s38, s38, {WS_STATS}",
             ("Y", f"buffer_store_dword v8, v9, {WS}, s38 offen sc1")]
    early = dma3(0) + dma3(1) + dma3(2)
    seq, left = interleave(body, early[:NE3], 10)
    emit(p, seq); p(ST("epi2")); emit(p, left + early[NE3:NB2])
    p(f"s_lshl_b32 s36, s{sRT}, 2", f"s_add_u32 s36, s36, s{sWAVE}", "s_lshl_b32 s36, s36, 3", f"s_add_u32 s36, s36, s{sCT}", "s_lshl_b32 s36, s36, 7", f"s_add_u32 s36, s36, {WS_G2}")
    wave_flag(p, "Y", "s36")
    p("s_barrier")
    p(ST("pub2"))
    p("v_mul_u32_u24 v7, 40960, v2", f"v_add_u32 v{YV}, v7, v{L16}", f"v_add_u32 v{YV+1}, 20480, v{YV}",
      f"s_mul_i32 s39, s{sRT4}, 163840", f"s_add_u32 s39, s39, {WS_Y}",
      f"s_add_u32 s{SY_}, s42, s39", f"s_addc_u32 s{SY_+1}, s43, 0", f"s_mov_b32 s{SY_+2}, 163840", f"s_mov_b32 s{SY_+3}, 0x20000",
      f"s_mul_i32 s39, s{sRT4}, 442368", f"s_add_u32 s39, s39, {WS_HH}",
      f"s_add_u32 s{SHH}, s42, s39", f"s_addc_u32 s{SHH+1}, s43, 0", f"s_mov_b32 s{SHH+2}, 442368", f"s_mov_b32 s{SHH+3}, 0x20000",
      f"v_add_u32 v{RA1}, {2*SLOT}, v{L16}", f"v_add_u32 v{RA2}, {4*SLOT}, v{L16}",
      "v_lshrrev_b32 v8, 1, v2", "v_lshlrev_b32 v8, 12, v8", "v_lshl_add_u32 v8, v4, 10, v8", "v_and_b32 v9, 1, v2", "v_lshl_add_u32 v8, v9, 8, v8", f"v_lshl_add_u32 v{SV3}, v3, 3, v8",
      f"v_lshrrev_b32 v8, 1, v{L16}", f"v_sub_u32 v10, v{YV}, v8", f"v_sub_u32 v11, v{YV+1}, v8",
      f"s_lshl_b32 s94, s{sRT4}, 13", f"s_add_u32 s94, s94, {WS_STATS}",
      "v_lshlrev_b32 v255, 7, v3", f"s_lshl_b32 s36, s{sRT4}, 2", f"s_add_u32 s36, s36, s{sWAVE}", "s_lshl_b32 s36, s36, 11", f"s_add_u32 s36, s36, {WS_G2}")
    p(f"s_mul_i32 s90, s{sCT4}, 448", f"s_add_u32 s90, s90, {WS_UW}", "s_add_u32 s91, s90, 6912", "s_add_u32 s92, s90, 13824", "s_add_u32 s93, s91, 13824",
      f"s_lshl_b32 s39, s{sPAR}, 6", f"v_add_u32 v12, s39, v{G16}", f"s_mul_i32 s39, s{sNB4}, 96", f"v_add_u32 v13, s39, v{G16}")
    uwl = []
    for m in range(2):
        for j in range(7):
            a_ = f"v12, {WS}, s%d offen offset:{64*j} sc1" if j < 6 else f"v13, {WS}, s%d offen sc1"
            uwl += [f"buffer_load_dwordx4 {vr(UW3+56*m+8*j,4)}, " + a_ % (90+m), f"buffer_load_dwordx4 {vr(UW3+56*m+8*j+4,4)}, " + a_ % (92+m)]
    early_poll(p, f"{name}_p2", (15, 255, "s36"), uwl + early[NB2:] + dma3(3) + dma3(4), EP[1], emit)
    p(ST("p2"))
    LEAD = LEAD3
    RAs = [L16, RA1, RA2]
    def yload(ks, tb):
        return f"buffer_load_dwordx4 {ar(BF3+8*(ks%BD)+4*tb,4)}, v{YV+tb}, {sr(SY_,4)}, s{sK4+ks//4} offen offset:{(ks%4)*1024} sc1"
    def yloads(ks):
        if ks % 5 == 2:
            return [f"buffer_load_dwordx2 {ar(BF3+8*(ks%BD)+4*tb+2*h,2)}, v{10+tb}, {sr(SY_,4)}, s{sK4+ks//4} offen offset:{(ks%4)*1024 + 512*h} sc1" for tb in range(2) for h in range(2)]
        return [yload(ks, tb) for tb in range(2)]
    def wreads(ks):
        sl = (ks // 2) % R
        base = (sl % 2) * SLOT + (ks % 2) * 14336
        return [f"ds_read_b128 {ar(WF3+56*(ks&1)+4*f,4)}, v{RAs[sl//2]} offset:{base + f*1024}" for f in range(14)]
    for ks in range(LEAD):
        for x in yloads(ks): p.vmem(x, f"Y{ks}")
    for tb in range(2):
        for h in range(2): p.vmem(f"buffer_load_dwordx2 {vr(STT+4*tb+2*h,2)}, v{SV3}, {WS}, s94 offen offset:{128*tb + 512*h} sc1", "S")
    p("s_barrier", wreads(0), f"s_waitcnt vmcnt({p.vmwait_n(['Y0'])}) lgkmcnt(0)")
    P4 = Skinny(False, groups([("a", 160, 240), ("v", 128, 232), ("a", 0, 96)]), 12, 16, 96, acct="v", at="a")
    P4.ST = ST
    pre = P4.preload()
    mf = []; tasks = []
    stat_tasks = []
    for ks in range(20):
        b = 28 * ks
        for tb in range(2):
            for m in range(2):
                for j in range(7):
                    d = vr(AC3 + 56*tb + 28*m + 4*j, 4)
                    mf.append(f"{MM} {d}, {ar(WF3+56*(ks&1)+28*m+4*j,4)}, {ar(BF3+8*(ks%BD)+4*tb,4)}, {d if ks else 0}")
        if ks < 19:
            for i, x in enumerate(wreads(ks + 1)):
                g = b + i + i // 2
                tasks.append(Task(x, "ds", lo=g, hi=g))
            tags = f"Y{ks+1}" + (",S" if ks == 1 else "")
            if (ks + 1) & 1 and (ks + 2) // 2 < 10:
                if (ks + 2) // 2 >= 5: tags += f",W{(ks+2)//2}"
                tasks.append(Task(f"WAITVM {tags} lgkm", "s", lo=b+26, hi=b+26)); tasks.append(Task("s_barrier", "s", lo=b+27, hi=b+27))
            else:
                tasks.append(Task(f"WAITVM {tags} lgkm", "s", lo=b+27, hi=b+27))
        for x in ST(f"k{ks}"): tasks.append(Task(x, "s", lo=b+22, hi=b+25))
        vm = []
        if ks + LEAD < 20: vm += [(f"Y{ks+LEAD}", x) for x in yloads(ks + LEAD)]
        st = (ks - 1) // 2 + 5
        if ks >= 1 and st < 10:
            d = dma3(st); vm += d[:4] if ks % 2 == 1 else d[4:]
        if ks == 10:
            prev = None
            for x in P4.setup_w():
                t = Task(x, "s" if x.startswith("s_") else "a", lo=b, hi=b+27, after=[prev] if prev else [], gapdist=1); tasks.append(t); prev = t
        if ks >= 11:
            lim = 20 if ks < 15 else 46
            n_ = min(8 - len(vm), W4R - len(vm), lim - (70 - len(pre)))
            n_ = max(n_, 0)
            vm += pre[:n_]; pre = pre[n_:]
        if 5 <= ks <= 12:
            for n_ in range((ks-5)*28//8, (ks-4)*28//8):
                tb, m, j = n_ // 14, (n_ // 7) % 2, n_ % 7
                a = STT + 4*tb
                for i in range(4):
                    r = AC3 + 4*n_ + i
                    t1 = Task(f"v_fmac_f32 v{r}, v{UW3+56*m+8*j+i}, v{a}", "a", lo=b+n_+5, hi=b+n_+23, after=stat_tasks[-1:])
                    t2 = Task(f"v_fmac_f32 v{r}, v{UW3+56*m+8*j+4+i}, v{a+3}", "a", lo=b+n_+5, hi=b+n_+24, after=[t1], gapdist=0)
                    tasks += [t1, t2]
        free = [b + 2 + 3*i for i in range(8)]
        for fi, x in enumerate(vm):
            for k_, y in enumerate(reversed(x[1:-1])):
                tasks.append(Task(y, "s", lo=free[fi]-1-k_, hi=free[fi]-1-k_))
            tasks.append(Task(x[-1], "vm", lo=free[fi], hi=free[fi], tag=x[0]))
        if ks == 2:
            prev = None
            for tb in range(2):
                a = STT + 4*tb
                sq = [f"v_add_f32 v{a}, v{a}, v{a+2}", f"v_add_f32 v{a+1}, v{a+1}, v{a+3}"]
                for sw in ("32", "16"):
                    sq += [f"v_mov_b32 v{a+2}, v{a}", f"v_mov_b32 v{a+3}, v{a+1}", f"v_permlane{sw}_swap_b32 v{a}, v{a+2}", f"v_permlane{sw}_swap_b32 v{a+1}, v{a+3}",
                           f"v_add_f32 v{a}, v{a}, v{a+2}", f"v_add_f32 v{a+1}, v{a+1}, v{a+3}"]
                sq += [f"v_mul_f32 v{a}, {f32(-1/640)}, v{a}", f"v_mul_f32 v{a+1}, {f32(1/640)}, v{a+1}", f"v_fma_f32 v{a+1}, -v{a}, v{a}, v{a+1}",
                       f"v_max_f32 v{a+1}, 0, v{a+1}", f"v_add_f32 v{a+1}, {f32(1e-5)}, v{a+1}", f"v_rcp_f32 v{a+2}, v{a+1}", f"v_sqrt_f32 v{a+3}, v{a+1}"]
                for x in sq:
                    t = Task(x, "e" if ("rcp" in x or "sqrt" in x) else "a", lo=b, hi=b+80, after=[prev] if prev else [], gapdist=2 if "permlane" in x else 1); tasks.append(t); prev = t
                    stat_tasks.append(t)
    emit_sched(p, schedule(mf, tasks))
    p(ST("p3end"))
    body = ["v_mul_u32_u24 v14, 110592, v2", f"v_add_u32 v14, v14, v{L16}", "v_add_u32 v15, 55296, v14",
            f"v_lshrrev_b32 v7, 1, v{L16}", "v_sub_u32 v248, v14, v7", "v_sub_u32 v249, v15, v7",
            f"s_lshr_b32 s39, s{sCT4}, 1", "s_mul_i32 s39, s39, 7168", f"s_lshl_b32 s38, s{sPAR}, 12", "s_add_u32 s37, s39, s38",
            f"s_cmp_eq_u32 s{sCT4}, 15", f"s_cselect_b32 s36, {OOB}, s37", f"s_lshl_b32 s38, s{sPAR}, 9", "s_add_u32 s38, s38, s39"]
    for tb in range(2):
        for jp in range(4):
            a = STT + 4*tb
            js = (2*jp, 2*jp + 1) if jp < 3 else (6,)
            t = AC3 + 56*tb + 28 + 4*js[0]
            for j in js:
                g_ = AC3 + 56*tb + 4*j; u_ = g_ + 28
                body += [f"v_max_f32 v{g_+i}, 0, v{g_+i}" for i in range(4)]
                body += [f"v_pk_mul_f32 {vr(u_+i,2)}, {vr(u_+i,2)}, {vr(a+2,2)} op_sel_hi:[1,0]" for i in (0, 2)]
                body += [f"v_pk_mul_f32 {vr(g_+i,2)}, {vr(g_+i,2)}, {vr(u_+i,2)}" for i in (0, 2)]
            for h, j in enumerate(js):
                g_ = AC3 + 56*tb + 4*j
                body += [f"v_cvt_pk_bf16_f32 v{t+2*h}, v{g_}, v{g_+1}", f"v_cvt_pk_bf16_f32 v{t+2*h+1}, v{g_+2}, v{g_+3}"]
            if jp < 3: body.append(("H", f"buffer_store_dwordx4 {vr(t,4)}, v{14 + tb}, {sr(SHH,4)}, s{37 if jp == 0 else 36} offen offset:{1024*jp} sc1"))
            else: body.append(("H", f"buffer_store_dwordx2 {vr(t,2)}, v{248 + tb}, {sr(SHH,4)}, s38 offen offset:3072 sc1"))
    if NW4:
        seq, left = interleave(body, pre[:NW4], len(body) // NW4)
        emit(p, seq); pre = left + pre[NW4:]
    else: emit(p, body)
    p(ST("epi3"))
    emit(p, pre[:NB3]); pre = pre[NB3:]
    p(f"s_lshl_b32 s36, s{sRT4}, 2", f"s_add_u32 s36, s36, s{sWAVE}", "s_lshl_b32 s36, s36, 4", f"s_add_u32 s36, s36, s{sCT4}", "s_lshl_b32 s36, s36, 7", f"s_add_u32 s36, s36, {WS_G3}")
    p(P4.setup_a(236))
    srd(p, SY_, 6, 7, 2621440)
    wave_flag(p, "H", "s36")
    p("s_barrier")
    p(ST("pub3"))
    p("v_and_b32 v7, 3, v1", "v_bfe_u32 v8, v1, 2, 1", "v_lshl_add_u32 v7, v8, 4, v7", "v_lshlrev_b32 v255, 7, v7",
      f"s_lshl_b32 s36, s{sRT}, 3", f"s_add_u32 s36, s36, s{sWAVE}", "s_lshl_b32 s36, s36, 9", f"s_add_u32 s36, s36, {WS_G3}")
    p(f"s_cmp_eq_u32 s{sWAVE}, 3", f"s_cselect_b32 s{sK4+3}, {OOB}, s{sK4+3}")
    G0, XR, U0, R0 = 96, 116, 128, 148
    gl = [("G", f"buffer_load_dwordx4 {vr(G0+4*nb,4)}, v{G16}, {WS}, s{62 if nb < 4 else 100} offen offset:{64*(nb%4)} sc1") for nb in range(5)]
    p([f"v_accvgpr_read_b32 v{XR+j}, a{240+j}" for j in range(10)])
    early_poll(p, f"{name}_p3", (14, 255, "s36"), gl + pre, EP[2], emit)
    p(ST("p3"))
    P4.main(p, [], 99)
    p(ST("p4end"))
    p(P4.exchange_out(T))
    p("s_waitcnt lgkmcnt(0)", "s_barrier")
    p(P4.exchange_in(T, R0, U0, XR, G0))
    for nb in range(5): p(f"buffer_store_dwordx2 {vr(XR+2*nb,2)}, v{RM}, {sr(SY_,4)}, s{63 if nb < 4 else 101} offen offset:{32*(nb%4)}")
    if stamp: p("s_waitcnt vmcnt(0)", ST("end"), stamp_out2(42, len(stamp)))
    p.label(f"{name}_end")
    p("s_endpgm")
```

```python
from asmlib import *
COST = {"e": 8, "a": 4, "ds": 4, "vm": 8, "s": 0, "b": 4}

class Task:
    def __init__(self, text, kind, lo=0, hi=10**9, after=None, tag=None, gapdist=1):
        self.text = text; self.kind = kind; self.lo = lo; self.hi = hi
        self.after = after or []
        self.gapdist = gapdist
        self.tag = tag; self.gap = None

def schedule(mf, tasks, cap=8):
    N = len(mf)
    pend = list(tasks)
    gaps = []
    g = 0
    while pend or g < N:
        room = cap; sal = None; ds = []; va = []; sal_extra = []
        unlimited = g >= N
        def ready(t):
            if t.lo > g: return False
            for a in t.after:
                if a.gap is None or a.gap + t.gapdist > g: return False
            return True
        while True:
            cand = [t for t in pend if ready(t)]
            cand.sort(key=lambda t: t.hi)
            placed = False
            for t in cand:
                forced = t.hi <= g or unlimited
                if t.kind in ("s", "b"):
                    if sal is None and (t.kind == "s" or room >= 4 or forced):
                        sal = t
                        if t.kind == "b": room -= 4
                    elif forced:
                        sal_extra.append(t)
                    else:
                        continue
                elif t.kind in ("ds", "vm"):
                    if (not ds and room >= COST[t.kind] and not (sal is not None and sal.kind == "b")) or forced:
                        ds.append(t); room -= COST[t.kind]
                    else:
                        continue
                else:
                    if room >= COST[t.kind] or forced:
                        va.append(t); room -= COST[t.kind]
                    else:
                        continue
                t.gap = g; pend.remove(t); placed = True
                break
            if not placed: break
        gaps.append(([sal] if sal else []) + sal_extra + ds + va)
        g += 1
        assert g < N + 10000
    out = []
    for i, gl in enumerate(gaps):
        if i < N: out.append((mf[i], None))
        for t in gl: out.append((t.text, t))
    return out

def fix_hazards(lines):
    out = []
    hist = []
    for l in lines:
        if l.endswith(":") or l.startswith("."):
            out.append(l); continue
        c = Ins(l)
        dist = 0; worst = 0
        for p in reversed(hist):
            if dist >= 20: break
            n = need(p, c)
            worst = max(worst, n - dist)
            dist += p.states
        if worst > 0:
            nop = f"s_nop {worst-1}"
            out.append(nop); hist.append(Ins(nop))
        out.append(l); hist.append(c)
        hist = hist[-24:]
    return out

WS_STAMP = 0x3000000
def stamp_out(wsreg, n, kidx=0):
    out = [f"s_add_u32 s84, s{wsreg}, {WS_STAMP + kidx*0x40000}", f"s_addc_u32 s85, s{wsreg+1}, 0", "s_mov_b32 s86, 0x40000", "s_mov_b32 s87, 0x20000",
           "v_lshrrev_b32 v1, 6, v0", "s_lshl_b32 s88, s2, 4", "v_add_u32 v1, s88, v1", "v_lshlrev_b32 v1, 6, v1"]
    for i in range(n):
        out += [f"s_sub_u32 s89, s{64+2*i}, s64", "v_mov_b32 v2, s89", f"buffer_store_dword v2, v1, s[84:87], 0 offen offset:{4*i}"]
    out += ["v_mov_b32 v2, s80", "buffer_store_dword v2, v1, s[84:87], 0 offen offset:56", "v_mov_b32 v2, s82", "buffer_store_dword v2, v1, s[84:87], 0 offen offset:60", "s_waitcnt vmcnt(0)"]
    return out

def stamp_out2(wsreg, n):
    out = ["s_memrealtime s[90:91]", f"s_add_u32 s92, s{wsreg}, {WS_STAMP}", f"s_addc_u32 s93, s{wsreg+1}, 0", "s_mov_b32 s94, 0x40000", "s_mov_b32 s95, 0x20000",
           "v_lshrrev_b32 v1, 6, v0", "s_lshl_b32 s96, s2, 4", "v_add_u32 v1, s96, v1", "v_lshlrev_b32 v1, 6, v1", "s_waitcnt lgkmcnt(0)"]
    for i in range(n):
        out += [f"s_sub_u32 s97, s{64+2*i}, s64", "v_mov_b32 v2, s97", f"buffer_store_dword v2, v1, s[92:95], 0 offen offset:{4*i}"]
    out += ["v_mov_b32 v2, s88", "buffer_store_dword v2, v1, s[92:95], 0 offen offset:56", "v_mov_b32 v2, s90", "buffer_store_dword v2, v1, s[92:95], 0 offen offset:60", "s_waitcnt vmcnt(0)"]
    return out
```

```python
from asmlib import *
from sched import *
from layout import *

MM = "v_mfma_f32_16x16x32_bf16"
Q0 = 16
ACC = 80
S0 = 80
P0 = 112
NM0 = 128
L0 = 144
T0 = 176
X0 = 184
ONES = 208
KA = 212
VA = 216
DV = 224
WA = 226
WV = 238
HV = 242
OV = 246
JFA, JFB, JCS, JD = 200, 204, 226, 230
JVA, JVB, JROW, JC16, JTR, JL16, JTV, JTD = 247, 248, 249, 250, 251, 252, 253, 254
O0 = 0
KF = 128
VF = 192
SK, SV, SW, SH, SO = 8, 12, 16, 20, 24
sWAVE, sWOFF, sTILE, sCNT, sTHR, sRET = 28, 29, 30, 31, 32, 34
sH4 = 36
sTMP = 40
VBASE = 65536

def S(q, i=0, n=1): return vr(S0 + 8*q + i, n)
def P(q): return P0 + 4*q
def L(par, q): return L0 + 16*par + 4*q
def NM(q): return NM0 + 4*q

QKORD = [0]
def qk_mfmas(par, q, first=False):
    out = []
    order = [(kb, ks) for kb in range(2) for ks in range(4)] if QKORD[0] == 0 else [(kb, ks) for ks in range(4) for kb in range(2)]
    if QKORD[0] == 2: order = [(0,0),(0,1),(0,2),(0,3),(1,3),(1,2),(1,1),(1,0)]
    seen = set()
    for kb, ks in order:
        if True:
            d = S(q, 4*kb, 4)
            c = d if kb in seen else ("0" if first else vr(NM(q), 4))
            seen.add(kb)
            out.append(f"{MM} {d}, {ar(KF + 32*par + 16*kb + 4*ks, 4)}, {vr(Q0 + 16*q + 4*ks, 4)}, {c}")
    return out
def qk_old(par, q, first=False):
    out = []
    for kb in range(2):
        for ks in range(4):
            d = S(q, 4*kb, 4)
            c = d if ks else ("0" if first else vr(NM(q), 4))
            out.append(f"{MM} {d}, {ar(KF + 32*par + 16*kb + 4*ks, 4)}, {vr(Q0 + 16*q + 4*ks, 4)}, {c}")
    return out
def pv_mfmas(par, q):
    return [f"{MM} {ar(O0+32*q+4*db,4)}, {ar(VF+32*par+4*db,4)}, {vr(P(q),4)}, {ar(O0+32*q+4*db,4)}" for db in range(8)]
def ones_mfma(par, q):
    return f"{MM} {vr(L(par,q),4)}, {vr(ONES,4)}, {vr(P(q),4)}, {vr(L(1-par,q),4)}"
def k_reads(n):
    st = (n // 2) % 4; half = n % 2; par = n & 1
    return [f"ds_read_b128 {ar(KF+32*par+16*kb+4*ks,4)}, v{KA+ks} offset:{st*16384 + (2*half+kb)*4096}" for kb in range(2) for ks in range(4)]
def v_reads(n):
    st = (n // 2) % 4; half = n % 2; par = n & 1
    return [f"ds_read_b64_tr_b16 {ar(VF+32*par+4*db+2*jh,2)}, v{VA+db} offset:{st*16384 + half*8192 + jh*4096}" for db in range(8) for jh in range(2)]
def kv_dma(srd, soff):
    return [f"buffer_load_dwordx4 v{DV+(t&1)}, {sr(srd,4)}, {soff} offen offset:{t*1024} nt lds" for t in range(4)]
def exp_i(q, i): return f"v_exp_f32 v{T0+i}, {S(q,i)}"
def cvt_i(q, i): return f"v_cvt_pk_bf16_f32 v{P(q)+i}, v{T0+2*i}, v{T0+2*i+1}"

def emit_sched(p, seq):
    for text, t in seq:
        if text.startswith("WAITVM"):
            parts = text.split()
            tags = parts[1].split(",")
            n = p.vmwait_n(tags)
            assert n <= 63
            p(f"s_waitcnt vmcnt({n})" + (" lgkmcnt(0)" if len(parts) > 2 else ""))
        elif t is not None and t.kind == "vm":
            p.vmem(text, t.tag)
        else:
            p(text.split(" !! "))

def xmax(t, t2):
    return [f"v_mov_b32 v{t2}, v{t}", f"v_permlane32_swap_b32 v{t}, v{t2}", f"v_max_f32 v{t}, v{t}, v{t2}",
            f"v_mov_b32 v{t2}, v{t}", f"v_permlane16_swap_b32 v{t}, v{t2}", f"v_max_f32 v{t}, v{t}, v{t2}"]

def gen_k2(name, stamp=False, LEAD=3, LW=5, l2pf=True, k3map=(8, 4), side_on=True, stflag='sc1'):
    p = Prog()
    p.label(name)
    def ST(i):
        return [f"s_memtime s[{64+2*i}:{65+2*i}]"] if stamp else []
    if stamp: p("s_memrealtime s[80:81]")
    p(ST(0))
    p("s_cmp_ge_u32 s2, 256", f"s_cbranch_scc1 {name}_end",
      "s_load_dwordx4 s[4:7], s[0:1], 8", "s_load_dwordx2 s[40:41], s[0:1], 24", "s_load_dwordx2 s[42:43], s[0:1], 104",
      "s_load_dwordx4 s[56:59], s[0:1], 48", "s_load_dwordx2 s[90:91], s[0:1], 32", "s_load_dwordx2 s[92:93], s[0:1], 64")
    p("v_and_b32 v1, 63, v0", "v_lshrrev_b32 v2, 6, v0", "v_and_b32 v3, 15, v0", "v_bfe_u32 v4, v0, 4, 2",
      "v_bfe_u32 v5, v0, 2, 2", "v_and_b32 v6, 3, v0",
      f"v_readfirstlane_b32 s{sWAVE}, v2")
    p("s_and_b32 s44, s2, 7", "s_lshl_b32 s44, s44, 2", "s_bfe_u32 s45, s2, 0x20003", "s_or_b32 s44, s44, s45",
      "s_lshr_b32 s45, s2, 5")
    p(f"s_lshl_b32 s{sWOFF}, s{sWAVE}, 12")
    for i in range(4): p(f"s_mov_b32 s{sH4+i}, {4096*(i+1)}")
    p(f"s_mov_b32 s{sTHR}, 0x53800000")
    p("v_lshlrev_b32 v7, 1, v4", "v_xor_b32 v8, v3, v7", "v_xor_b32 v9, 8, v8",
      "v_lshl_add_u32 v10, v2, 4, v4")
    p("v_lshlrev_b32 v11, 13, v10")
    for t in range(4):
        p(f"v_lshl_add_u32 v{WV+t}, v{8+(t&1)}, 4, v11")
        if t: p(f"v_add_u32 v{WV+t}, {t*(4*8192-1024)}, v{WV+t}")
    p("v_lshlrev_b32 v11, 8, v10", f"v_lshl_add_u32 v{DV}, v8, 4, v11", f"v_lshl_add_u32 v{DV+1}, v9, 4, v11")
    p("v_mul_u32_u24 v11, 81920, v2", "v_lshl_add_u32 v11, v1, 4, v11")
    for q in range(4):
        p(f"v_add_u32 v{HV+q}, {q*20480}, v11")
    p("s_waitcnt lgkmcnt(0)")
    p("s_lshl_b32 s46, s44, 19",
      f"s_add_u32 s{SK}, s4, s46", f"s_addc_u32 s{SK+1}, s5, 0", f"s_mov_b32 s{SK+2}, 0x80000", f"s_mov_b32 s{SK+3}, 0x20000",
      f"s_add_u32 s{SV}, s6, s46", f"s_addc_u32 s{SV+1}, s7, 0", f"s_mov_b32 s{SV+2}, 0x80000", f"s_mov_b32 s{SV+3}, 0x20000",
      "s_lshl_b32 s46, s44, 8",
      f"s_add_u32 s{SW}, s40, s46", f"s_addc_u32 s{SW+1}, s41, 0", f"s_sub_u32 s{SW+2}, 5242880, s46", f"s_mov_b32 s{SW+3}, 0x20000",
      "s_mul_i32 s46, s45, 327680", f"s_add_u32 s46, s46, {WS_H1}",
      f"s_add_u32 s{SH}, s42, s46", f"s_addc_u32 s{SH+1}, s43, 0", f"s_mov_b32 s{SH+2}, 327680", f"s_mov_b32 s{SH+3}, 0x20000",
      "s_lshl_b32 s46, s45, 21", f"s_add_u32 s46, s46, {WS_AO}",
      f"s_add_u32 s{SO}, s42, s46", f"s_addc_u32 s{SO+1}, s43, 0", f"s_mov_b32 s{SO+2}, 0x200000", f"s_mov_b32 s{SO+3}, 0x20000")
    def wq_dma(w):
        return [f"buffer_load_dwordx4 v{WV+t}, {sr(SW,4)}, s47 offen offset:{t*1024} nt lds" for t in range(4)]
    def h_load(s, q):
        so = "0" if s < 4 else f"s{sH4 + s//4 - 1}"
        return f"buffer_load_dwordx4 {ar(((s%8)*4+q)*4,4)}, v{HV+q}, {sr(SH,4)}, {so} offen offset:{(s%4)*1024}"
    wstep = {w: 2*w - LW for w in range(10)}
    for w in range(10):
        if wstep[w] < 0:
            p(f"s_add_u32 m0, s{sWOFF}, {w*16384}", f"s_mov_b32 s47, {w*524288}")
            for x in wq_dma(w): p.vmem(x, f"W{w}")
        for s in (2*w, 2*w+1):
            if s < LEAD:
                for q in range(4): p.vmem(h_load(s, q), f"H{s}_{q}")
    p("v_and_b32 v7, 7, v3", "v_lshlrev_b32 v7, 1, v7", "v_xor_b32 v7, v4, v7", "v_lshlrev_b32 v8, 8, v3")
    for ks in range(4):
        p(f"v_xor_b32 v9, {4*ks}, v7", f"v_lshl_add_u32 v{KA+ks}, v9, 4, v8")
    p("v_lshl_add_u32 v7, v4, 2, v5", "v_and_b32 v8, 7, v7", "v_lshlrev_b32 v7, 8, v7")
    p("v_lshl_add_u32 v9, v6, 3, v7", f"v_add_u32 v9, {VBASE}, v9")
    for db in range(8):
        p(f"v_xor_b32 v10, {db}, v8", f"v_lshl_add_u32 v{VA+db}, v10, 5, v9")
    p("v_lshlrev_b32 v8, 1, v8", "v_xor_b32 v8, v6, v8")
    for t in range(4):
        p(f"v_xor_b32 v10, {4*t}, v8", f"v_lshl_add_u32 v{WA+t}, v10, 4, v7",
          f"v_add_u32 v{WA+4+t}, 0x10000, v{WA+t}", f"v_add_u32 v{WA+8+t}, 0x20000, v{WA+t}")
    p("v_lshlrev_b32 v7, 19, v2", "v_lshl_add_u32 v7, v1, 4, v7", "s_lshl_b32 s46, s44, 12", f"v_add_u32 v{OV}, s46, v7")
    for i in range(4): p(f"v_mov_b32 v{ONES+i}, 0x3f803f80")
    p("s_lshr_b32 s60, s2, 3", "s_min_u32 s60, s60, 26", "s_and_b32 s61, s2, 7", "s_mul_i32 s61, s61, 27", "s_add_u32 s60, s60, s61",
      "s_sub_u32 s61, s60, 108", "s_cmp_ge_u32 s60, 108", "s_cselect_b32 s61, s61, s60", "s_cselect_b32 s48, s58, s56", "s_cselect_b32 s49, s59, s57",
      "s_cselect_b32 s57, 7168, 0", "s_mov_b32 s50, 2211840", "s_mov_b32 s51, 0x20000",
      "s_mul_i32 s58, s61, 9363", "s_lshr_b32 s58, s58, 16", "s_mul_i32 s59, s58, 7", "s_sub_u32 s59, s61, s59",
      "s_mul_i32 s58, s58, 286720", "s_lshl_b32 s59, s59, 10", "s_add_u32 s57, s57, s58", "s_add_u32 s57, s57, s59",
      f"s_mul_i32 s58, s{sWAVE}, 71680", "s_add_u32 s57, s57, s58", f"s_add_u32 s57, s57, {WS_GUF}",
      "s_lshl_b32 s56, s61, 5", f"s_mul_i32 s58, s{sWAVE}, {5*110592}", "s_add_u32 s56, s56, s58",
      f"s_mul_i32 s58, s{sWAVE}, 5120", f"s_add_u32 s58, s58, {WS_CS}", "s_mov_b32 s59, 3456", "s_mov_b32 s94, 110592", "s_mov_b32 s95, 14336",
      "s_mov_b32 s52, s42", "s_mov_b32 s53, s43", "s_mov_b32 s54, 0x3000000", "s_mov_b32 s55, 0x20000",
      "s_mov_b32 s96, s90", "s_mov_b32 s97, s91", "s_mov_b32 s98, 5242880", "s_mov_b32 s99, 0x20000",
      "s_lshr_b32 s46, s2, 1", "s_mul_i32 s46, s46, 40960", "s_and_b32 s47, s2, 1", "s_mul_i32 s47, s47, 20", f"s_add_u32 s47, s47, s{sWAVE}",
      "s_lshl_b32 s61, s47, 5", "s_add_u32 s61, s61, s46", "s_lshl_b32 s63, s47, 10", "s_add_u32 s63, s63, s46", f"s_add_u32 s63, s63, {WS_WOF}",
      "s_mul_i32 s46, s2, 6554", "s_lshr_b32 s46, s46, 16", "s_mul_i32 s47, s46, 10", "s_sub_u32 s47, s2, s47", "s_lshl_b32 s47, s47, 2", f"s_add_u32 s47, s47, s{sWAVE}",
      "s_mul_i32 s46, s46, 40960", "s_lshl_b32 s90, s47, 5", "s_add_u32 s90, s90, s46", "s_lshl_b32 s91, s47, 10", "s_add_u32 s91, s91, s46", f"s_add_u32 s91, s91, {WS_WDF}",
      "s_cmp_ge_u32 s2, 180", "s_cselect_b32 s90, 0x4000000, s90", "s_cselect_b32 s91, 0x4000000, s91",
      "s_lshr_b32 s46, s2, 3", "s_lshl_b32 s46, s46, 2", f"s_add_u32 s46, s46, s{sWAVE}", "s_mul_i32 s46, s46, 40960", f"s_add_u32 s101, s46, {WS_WOF}",
      "s_and_b32 s46, s2, 1", f"s_mul_i32 s46, s46, {20480 if k3map[1] == 4 else 0}", "s_add_u32 s101, s101, s46",
      f"s_lshl_b32 s62, s{sWAVE}, 11", "s_add_u32 s62, s62, 0x20000")
    p(f"v_lshrrev_b32 v{JROW}, 1, v1", f"v_and_b32 v{JC16}, 1, v1", f"v_lshlrev_b32 v{JC16}, 4, v{JC16}",
      f"v_mul_u32_u24 v{JVB}, 1280, v{JROW}", f"v_add_u32 v{JVB}, v{JVB}, v{JC16}", f"v_lshlrev_b32 v{JL16}, 4, v1", f"v_lshlrev_b32 v{JTV}, 7, v1",
      "v_lshl_add_u32 v7, v4, 2, v5", "v_lshlrev_b32 v7, 5, v7", "v_lshl_add_u32 v7, v6, 3, v7", f"v_add_u32 v{JTR}, s62, v7")
    def w_reads(s):
        w = s // 2; base = w * 16384 + (s % 2) * 8192; st = base >> 16; base &= 0xffff
        par = s & 1
        return [f"ds_read_b64_tr_b16 {ar(VF+32*par+4*T+2*rd,2)}, v{WA+4*st+T//2} offset:{base + rd*4096 + (T&1)*8}" for T in range(8) for rd in range(2)]
    p(f"s_waitcnt vmcnt({p.vmwait_n(['W0'])})", "s_barrier")
    p(ST(1))
    p(w_reads(0))
    p(f"s_waitcnt vmcnt({p.vmwait_n(['H0_0'])}) lgkmcnt(0)")
    mf = []; tasks = []
    for s in range(20):
        b = 32 * s
        for q in range(4):
            for T in range(8):
                d = vr(ACC + 32*q + 4*T, 4)
                mf.append(f"{MM} {d}, {ar(VF+32*(s&1)+4*T,4)}, {ar(((s%8)*4+q)*4,4)}, {d if s else 0}")
        for q in range(4):
            ns, nq = (s, q+1) if q < 3 else (s+1, 0)
            if ns < 20:
                lg = " lgkm" if q == 3 else ""
                tags = f"H{ns}_{nq}"
                if q == 3 and (ns & 1):
                    wn = (ns + 1) // 2
                    if wn < 10: tags += f",W{wn}"
                    if ns == 17: tags += ",K0"
                    if ns == 19: tags += ",V0"
                    tw = Task(f"WAITVM {tags}{lg}", "s", lo=b+8*q+6, hi=b+8*q+6)
                    tasks.append(tw)
                    tasks.append(Task("s_barrier", "s", lo=b+8*q+7, hi=b+8*q+7))
                else:
                    tasks.append(Task(f"WAITVM {tags}{lg}", "s", lo=b+8*q+7, hi=b+8*q+7))
        rd = w_reads(s+1) if s < 19 else v_reads(0)
        if s == 17: rd = rd + k_reads(0)
        if s == 18: rd = rd + k_reads(1)
        prev = None
        for i, x in enumerate(rd):
            t = Task(x, "ds", lo=b, hi=b+27, after=[prev] if prev else [])
            tasks.append(t); prev = t
        for q in range(4):
            if s + LEAD < 20:
                tasks.append(Task(h_load(s+LEAD, q), "vm", lo=b+8*q+1, hi=b+8*q+1, tag=f"H{s+LEAD}_{q}"))
            if s >= 12:
                for i in range(4):
                    tasks.append(Task(f"v_accvgpr_write_b32 a{((s%8)*4+q)*4+i}, 0", "a", lo=b+8*q+7, hi=b+8*q+60))
        dm = None
        for w in range(10):
            if wstep[w] == s:
                dm = (f"s_add_u32 m0, s{sWOFF}, {w*16384}", f"s_mov_b32 s47, {w*524288}", wq_dma(w), f"W{w}")
        kvs = {14: ("K", 0), 15: ("V", 0), 16: ("K", 1), 17: ("V", 1), 18: ("K", 2), 19: ("V", 2)}
        if s in kvs:
            assert dm is None
            kind, tl = kvs[s]
            dm = (f"s_add_u32 m0, s{sWOFF}, {tl*16384 + (VBASE if kind == 'V' else 0)}", f"s_mov_b32 s47, {tl*16384}",
                  kv_dma(SK if kind == "K" else SV, "s47"), f"{kind}{tl}")
        if dm:
            t1 = Task(dm[0], "s", lo=b+2, hi=b+2); t2 = Task(dm[1], "s", lo=b+3, hi=b+3)
            tasks += [t1, t2]
            for i, x in enumerate(dm[2]):
                tasks.append(Task(x, "vm", lo=b+8*i+5, hi=b+8*i+5, tag=dm[3]))
    b = len(mf)
    for q in range(4):
        for t in range(4):
            for j in range(4):
                a = ACC + 32*q + 8*t + 2*j
                tasks.append(Task(f"v_cvt_pk_bf16_f32 v{Q0+16*q+4*t+j}, v{a}, v{a+1}", "a", lo=b-32+8*q+7+4, hi=b+8*q-2 if q else b-3))
    for q in range(4):
        mf += qk_mfmas(0, q, first=True)
    tasks.append(Task("s_waitcnt lgkmcnt(0)", "s", lo=b-1, hi=b-1))
    lastcvt = [t for t in tasks if t.text.startswith("v_cvt_pk_bf16_f32")]
    for i in range(16):
        tasks.append(Task(f"v_mov_b32 v{L(1,0)+i}, 0", "a", lo=b, after=lastcvt))
    for i in range(4):
        tasks.append(Task(f"v_mov_b32 v{JD+i}, 0", "a", lo=b, after=lastcvt))
    chain_end = {}
    for q in range(4):
        t0 = X0 + 2*q; t1 = t0 + 1
        seq = [f"v_max3_f32 v{t0}, {S(q,0)}, {S(q,1)}, {S(q,2)}", f"v_max3_f32 v{t0}, v{t0}, {S(q,3)}, {S(q,4)}",
               f"v_max3_f32 v{t0}, v{t0}, {S(q,5)}, {S(q,6)}", f"v_max_f32 v{t0}, v{t0}, {S(q,7)}"] + xmax(t0, t1)
        prev = None
        for x in seq:
            t = Task(x, "a", lo=b+8*q+7+4, after=([prev] if prev else []) + lastcvt); tasks.append(t); prev = t
        subs = []
        for i in range(8):
            t = Task(f"v_sub_f32 {S(q,i)}, {S(q,i)}, v{t0}", "a", after=[prev]); tasks.append(t); subs.append(t)
        for i in range(4):
            tasks.append(Task(f"v_sub_f32 v{NM(q)+i}, 0, v{t0}", "a", after=[prev]))
        chain_end[q] = subs
    prevc = []
    for q in range(3):
        es = []
        for i in range(8):
            t = Task(exp_i(q, i), "e", after=[chain_end[q][i]] + prevc); tasks.append(t); es.append(t)
        prevc = []
        for i in range(4):
            t = Task(cvt_i(q, i), "a", after=[es[2*i], es[2*i+1]]); tasks.append(t); prevc.append(t)
    start = len(p.lines)
    emit_sched(p, schedule(mf, tasks))
    p(ones_mfma(0, 0), ones_mfma(0, 1))
    p(ST(2))
    p(f"s_mov_b32 s{sTILE}, {3*16384}", f"s_mov_b32 s{sCNT}, 0")
    p(f"s_waitcnt vmcnt({p.vmwait_n(['K1','V1'])}) lgkmcnt(0)", "s_barrier")
    p(ST(3))
    if stamp: p("s_waitcnt lgkmcnt(0)")
    p.lines = fix_hazards(p.lines)
    pro = list(p.lines)
    sites = []
    def unit(n, q):
        oq = (q + 2) % 4; opar = (n + 1) & 1 if q >= 2 else n & 1
        sq = (q + 3) % 4
        m = [ones_mfma(opar, oq)] + qk_mfmas((n + 1) & 1, q) + pv_mfmas(n & 1, q)
        sal = [[] for _ in range(17)]; lo = [[] for _ in range(17)]; va = [[] for _ in range(17)]
        site = len(sites); sites.append((opar, oq))
        cmp_ = f"v_cmp_lt_f32 vcc, s{sTHR}, v{L(opar,oq)}"
        br = [f"s_cbranch_vccnz {name}_rs{site}", f"{name}_rb{site}:"]
        if q < 3:
            rd = (v_reads(n+1) + k_reads(n+2))[8*q:8*q+8]
            eg = [0, 1, 4, 5, 8, 9, 13, 14]; dg = [2, 3, 6, 7, 10, 12, 15, 16]
            for i, g in enumerate(eg): va[g].append(exp_i(sq, i))
            for i, g in enumerate(dg): lo[g].append(rd[i])
            va[2].append(cvt_i(sq, 0)); va[6].append(cvt_i(sq, 1)); va[10].append(cvt_i(sq, 2)); va[15].append(cvt_i(sq, 3))
            va[7].append(cmp_); sal[11] += br
        else:
            tile_st = ((n // 2) + 3) % 4
            isv = n & 1
            dm = kv_dma(SV if isv else SK, f"s{sTILE}")
            sal[0].append(f"s_add_u32 m0, s{sWOFF}, {tile_st*16384 + (VBASE if isv else 0)}")
            eg = [0, 2, 4, 6, 9, 10, 11, 12]
            for i, g in enumerate(eg): va[g].append(exp_i(sq, i))
            for i, g in enumerate([1, 3, 5, 7]): lo[g].append(dm[i])
            va[8] += [cmp_, cvt_i(sq, 0)]
            va[13] += [cvt_i(sq, 1)]; sal[13] += br
            va[14] += [cvt_i(sq, 2), cvt_i(sq, 3)]
            if isv:
                sal[9].append(f"s_add_u32 s{sTILE}, s{sTILE}, 16384")
                sal[14].append(f"WAIT {n}"); sal[15].append("s_barrier")
            else:
                sal[14].append("s_waitcnt lgkmcnt(0)")
            if n == 6:
                sal[10].append(f"s_add_u32 s{sCNT}, s{sCNT}, 1"); sal[11].append(f"s_cmp_eq_u32 s{sCNT}, 8")
            if side_on:
                if n == 0:
                    sal[12].append("s_mov_b32 m0, s62")
                    lo[15].append(f"buffer_load_dwordx4 v{JVA}, s[48:51], s56 offen nt lds ;J")
                    lo[16].append(f"buffer_load_dwordx4 {vr(JCS,4)}, v{JL16}, s[52:55], s58 offen ;J")
                if n == 1:
                    sal[12].append("s_add_u32 m0, s62, 1024")
                    lo[15].append(f"buffer_load_dwordx4 v{JVB}, s[96:99], s61 offen nt lds ;J")
                if n in (4, 5):
                    f = JFA if n == 4 else JFB
                    lo[15].append(f"ds_read_b64_tr_b16 {vr(f,2)}, v{JTR} offset:{(n-4)*1024}")
                    lo[16].append(f"ds_read_b64_tr_b16 {vr(f+2,2)}, v{JTR} offset:{(n-4)*1024 + 512}")
                if n == 6:
                    lo[15].append(f"buffer_store_dwordx4 {vr(JFA,4)}, v{JL16}, s[52:55], s57 offen {stflag}")
                    lo[16].append(f"buffer_store_dwordx4 {vr(JFB,4)}, v{JL16}, s[52:55], s63 offen {stflag}")
                    va[16].append(f"{MM} {vr(JD,4)}, {vr(JFA,4)}, {vr(JCS,4)}, {vr(JD,4)}")
        if side_on and n == 0 and q == 0:
            va[3].append(f"v_mad_u32_u24 v{JVA}, v{JROW}, s59, v{JC16}")
        if side_on and n == 7 and q == 0:
            upd = ["s_add_u32 s56, s56, s94", "s_add_u32 s57, s57, s95", "s_add_u32 s58, s58, 1024", "s_add_u32 s61, s61, 128", "s_add_u32 s63, s63, 4096"]
            for i, x in enumerate(upd): sal[i].append(x)
        if side_on and n == 7 and q == 1:
            upd = [f"s_cmp_eq_u32 s{sCNT}, 5", "s_cselect_b32 s48, s92, s48", "s_cselect_b32 s49, s93, s49", "s_cselect_b32 s56, s90, s56", "s_cselect_b32 s57, s91, s57",
                   "s_cselect_b32 s58, 0x4000000, s58", "s_cselect_b32 s59, 1280, s59", f"s_cselect_b32 s94, {18*40960}, s94", f"s_cselect_b32 s95, {18*40960}, s95",
                   "s_cselect_b32 s61, 0x4000000, s61", "s_cselect_b32 s63, 0x4000000, s63"]
            for i, x in enumerate(upd): sal[i].append(x)
        out = []
        for g in range(17):
            out.append(m[g]); out += sal[g] + lo[g] + va[g]
        return out
    loop = [".p2align 6", f"{name}_loop:"]
    for n in range(8):
        loop.append(f";STEP {n}")
        for q in range(4):
            loop += unit(n, q)
        if n == 6: loop.append(f"s_cbranch_scc1 {name}_tail")
    loop.append(f"s_branch {name}_loop")
    stepof = []; cur = 0
    res = []
    vmseq = []
    for rep in range(2):
        cur = 0
        for x in loop:
            if x.startswith(";STEP"): cur = int(x.split()[1])
            elif x.startswith("buffer_"): vmseq.append((rep*8 + cur, "store" in x or ";J" in x or "load_dword " in x))
            elif x.startswith("WAIT") and rep == 1:
                lim = 8 + cur - 2
                last = max(i for i, (st_, isst) in enumerate(vmseq) if st_ <= lim and not isst)
                res.append(len(vmseq) - 1 - last)
    it = iter(res)
    loop = [f"s_waitcnt vmcnt({next(it)}) lgkmcnt(0)" if x.startswith("WAIT") else x.replace(" ;J", "") for x in loop if not x.startswith(";STEP")]
    print("barrier vmcnt", res)
    cut = loop.index(f"s_cbranch_scc1 {name}_tail")
    tl = []
    s2 = len(sites); sites.append((1, 2)); s3 = len(sites); sites.append((1, 3))
    pv = [pv_mfmas(1, q) for q in range(4)]
    tl.append(ones_mfma(1, 2))
    offs = [] if not l2pf else ([0, 8192, 12288] if k3map[1] == 4 else [0, 8192, 16384, 24576, 32768][:l2pf])
    for i in range(8):
        tl += [pv[0][i]]
        if i < len(offs): tl += [f"s_add_u32 s100, s101, {offs[i]}", f"buffer_load_dword v{JTD}, v{JTV}, s[52:55], s100 offen"]
        tl += [exp_i(3, i)]
    tl += [pv[1][0], cvt_i(3, 0), cvt_i(3, 1), pv[1][1], cvt_i(3, 2), cvt_i(3, 3), pv[1][2], f"v_cmp_lt_f32 vcc, s{sTHR}, v{L(1,2)}",
           ones_mfma(1, 3), pv[1][3], pv[1][4], pv[1][5], f"s_cbranch_vccnz {name}_rs{s2}", f"{name}_rb{s2}:", pv[1][6], pv[1][7]]
    def norm(q):
        r = X0 + 8
        out = [f"v_rcp_f32 v{r}, v{L(1,q)}"]
        for tt in range(4):
            bb = S0 + 8*tt
            d = X0 + 4*(tt & 1) if False else S0 + 8*tt
            o = []
            for i in range(8): o.append(f"v_accvgpr_read_b32 v{Q0+16*q+ (8*(tt&1)) + i}, a{O0+32*q+8*tt+i}")
            base = Q0 + 16*q + 8*(tt & 1)
            for i in range(8): o.append(f"v_mul_f32 v{base+i}, v{base+i}, v{r}")
            dst = T0 + 4*(tt & 1)
            for i in range(4): o.append(f"v_cvt_pk_bf16_f32 v{dst+i}, v{base+2*i}, v{base+2*i+1}")
            o.append(f"buffer_store_dwordx4 {vr(dst,4)}, v{OV}, {sr(SO,4)}, s46 offen offset:{tt*1024}")
            out += o
        return [f"s_mov_b32 s46, {q*131072}"] + out
    n0 = norm(0)
    k = 0
    fill = n0
    seq = [pv[2][0], f"v_cmp_lt_f32 vcc, s{sTHR}, v{L(1,3)}"]
    for i in range(1, 8):
        seq += [pv[2][i]] + fill[k:k+2]; k += 2
    seq += [f"s_cbranch_vccnz {name}_rs{s3}", f"{name}_rb{s3}:"]
    for i in range(8):
        seq += [pv[3][i]] + fill[k:k+2]; k += 2
    seq += fill[k:]
    tl += seq
    U = KA
    tl += ["v_lshlrev_b32 v7, 4, v0", "v_add_u32 v7, 0x25000, v7", f"ds_write_b128 v7, {vr(JD,4)}", "s_waitcnt lgkmcnt(0)", "s_barrier"]
    tl += norm(1)
    tl += [f"v_add_u32 v7, 0x25000, v{JL16}"] + [f"ds_read_b128 {vr(U+4*w,4)}, v7 offset:{w*1024}" for w in range(4)]
    tl += norm(2)
    tl += ["s_waitcnt lgkmcnt(0)"]
    for i in (0, 2):
        tl += [f"v_pk_add_f32 {vr(U+i,2)}, {vr(U+i,2)}, {vr(U+4+i,2)}", f"v_pk_add_f32 {vr(U+8+i,2)}, {vr(U+8+i,2)}, {vr(U+12+i,2)}"]
    for i in (0, 2):
        tl += [f"v_pk_add_f32 {vr(U+i,2)}, {vr(U+i,2)}, {vr(U+8+i,2)}"]
    tl += ["v_mul_u32_u24 v7, 13824, v3", "v_lshl_add_u32 v7, v4, 4, v7", "v_and_b32 v8, 0xce, v0", "v_cmp_eq_u32 vcc, 0, v8", "v_mov_b32 v8, 0x4000000",
           "v_cndmask_b32 v7, v8, v7, vcc", "s_lshl_b32 s61, s60, 6", f"s_add_u32 s61, s61, {WS_UW}",
           f"buffer_store_dwordx4 {vr(U,4)}, v7, s[52:55], s61 offen"]
    tl += norm(3)
    pre_ctx = [x for x in loop[:cut] if not (x.endswith(":") or x.startswith("."))][-24:]
    tl = fix_hazards(pre_ctx + tl)[len(pre_ctx):]
    fin = []
    if stamp:
        fin = ST(5) + ["s_waitcnt vmcnt(0)"] + ST(6) + ["s_memrealtime s[82:83]", "s_waitcnt lgkmcnt(0)"] + stamp_out(42, 7, 1)
    tail = [f"{name}_tail:"] + ST(4) + (["s_waitcnt lgkmcnt(0)"] if stamp else []) + tl + fin + [f"{name}_end:", "s_endpgm"]
    rare = []
    for i, (par, q) in enumerate(sites):
        rare += [f"{name}_rs{i}:", f"s_call_b64 {sr(sRET,2)}, {name}_rare{par}{q}", f"s_branch {name}_rb{i}"]
    for par in range(2):
        for q in range(4):
            t0, t1, sc = X0 + 10, X0 + 11, X0 + 12
            r = ["s_nop 15", f"v_max3_f32 v{t0}, {S(q,0)}, {S(q,1)}, {S(q,2)}", f"v_max3_f32 v{t0}, v{t0}, {S(q,3)}, {S(q,4)}",
                 f"v_max3_f32 v{t0}, v{t0}, {S(q,5)}, {S(q,6)}", f"v_max3_f32 v{t0}, v{t0}, {S(q,7)}, 0"] + xmax(t0, t1)
            r += [f"v_exp_f32_e64 v{sc}, -v{t0}"]
            r += [f"v_sub_f32 {S(q,i)}, {S(q,i)}, v{t0}" for i in range(8)]
            r += [f"v_sub_f32 v{NM(q)+i}, v{NM(q)+i}, v{t0}" for i in range(4)]
            r += [f"v_mul_f32 v{L(1-par,q)+i}, v{L(1-par,q)+i}, v{sc}" for i in range(4)]
            for i in range(32):
                r += [f"v_accvgpr_read_b32 v{t1}, a{O0+32*q+i}", f"v_mul_f32 v{t1}, v{t1}, v{sc}", f"v_accvgpr_write_b32 a{O0+32*q+i}, v{t1}"]
            for i in range(4):
                r += [f"v_exp_f32 v{X0+13}, {S(q,2*i)}", f"v_exp_f32 v{X0+14}, {S(q,2*i+1)}", f"v_cvt_pk_bf16_f32 v{P(q)+i}, v{X0+13}, v{X0+14}"]
            r += [ones_mfma(par, q), "s_nop 15", f"s_setpc_b64 {sr(sRET,2)}"]
            rare += [f"{name}_rare{par}{q}:"] + fix_hazards(r)
    bad = check_linear(pro + loop + loop, "k2 main") + check_linear(loop[:cut] + tail, "k2 tail")
    assert bad == 0
    p.lines = pro + loop + tail + rare
    return p.text(), dict(vgpr=512, acc=256, sgpr=102, lds=163840, grid=256, block=256)
```

```python
from asmlib import *
from sched import *
from layout import *
from k1 import srd, f32, QSCALE
import k2
from k2 import *
import math
WS = "s[52:55]"
OOB = 0x4000000
sNON = 3

def poll(p, lab, loads, sleep=1):
    p("s_mov_b32 s33, 0")
    p.label(lab)
    for d, a, so in loads: p(f"buffer_load_dword v{d}, v{a}, {WS}, {so} offen sc1")
    p("s_add_u32 s33, s33, 1", "s_waitcnt vmcnt(0)")
    check(p, [d for d, _, _ in loads])
    p(f"s_cbranch_vccz {lab}_ok", "s_cmp_gt_u32 s33, 0x8000", f"s_cbranch_scc1 {lab}_ok")
    if sleep: p(f"s_sleep {sleep}")
    p(f"s_branch {lab}")
    p.label(f"{lab}_ok")
    p.vm = []
def early_poll(p, lab, ld, seq, nafter, emit):
    d, a, so = ld
    if nafter == 0:
        emit(p, seq); poll(p, lab, [ld]); return
    emit(p, seq[:-nafter])
    p.vmem(f"buffer_load_dword v{d}, v{a}, {WS}, {so} offen sc1", "FLAG")
    emit(p, seq[-nafter:])
    p(f"s_waitcnt vmcnt({p.vmwait_n(['FLAG'])})")
    check(p, [d])
    p(f"s_cbranch_vccz {lab}_ok")
    save = list(p.vm)
    poll(p, lab, [ld])
    p.vm = save
def check(p, regs):
    if len(regs) == 1:
        p(f"v_cmp_ne_u32 vcc, s{sNON}, v{regs[0]}", "s_nop 1")
        return
    for r in regs: p(f"v_xor_b32 v{r}, s{sNON}, v{r}")
    for r in regs[1:]: p(f"v_or_b32 v{regs[0]}, v{regs[0]}, v{r}")
    p(f"v_cmp_ne_u32 vcc, 0, v{regs[0]}", "s_nop 1")
def set_flag(p, lab, soff, t0=8, t1=9):
    p(f"s_cmp_lg_u32 s{sWAVE}, 0", f"s_cbranch_scc1 {lab}", f"v_mov_b32 v{t0}, s{sNON}", f"v_mov_b32 v{t1}, 0",
      f"buffer_store_dword v{t0}, v{t1}, {WS}, {soff} offen sc1")
    p.label(lab)

def gen_mega(name, stamp=False, LEAD=4, NW_A=14, NW_B=0, NW4=0, NE3=7, CT=True, EP=(24, 10, 10), TW=True, CW=6, NE=9, WQNT='nt', XNT='nt', PSC='sc1', PSL=2, PSL2=1, DEL=0, DELE=0, EL=True, XT=False, DBG=0, GA=15, BG=16, RT=False, O4=True, QO=0, TLB=False, **kw):
    p = Prog()
    def ST(nm):
        if not stamp or nm not in stamp: return []
        i = stamp.index(nm)
        return [f"{'s_memrealtime' if RT else 's_memtime'} s[{64+2*i}:{65+2*i}]"]
    p.label(name)
    if stamp: p("s_memrealtime s[88:89]")
    p(ST("start"))
    p("s_cmp_ge_u32 s2, 256", f"s_cbranch_scc1 {name}_end",
      "s_load_dwordx4 s[40:43], s[0:1], 96", "s_load_dwordx4 s[12:15], s[0:1], 72", "s_load_dwordx8 s[4:11], s[0:1], 0",
      "s_load_dwordx4 s[56:59], s[0:1], 48", "s_load_dwordx2 s[90:91], s[0:1], 32", "s_load_dwordx2 s[92:93], s[0:1], 64",
      "s_memrealtime s[46:47]")
    if CT:
        p("s_getpc_b64 s[48:49]", "s_mov_b32 s50, 8192", "s_mov_b32 s51, 0x20000", "v_lshlrev_b32 v16, 7, v0", "buffer_load_dword v17, v16, s[48:51], 0 offen")
    p("v_and_b32 v1, 63, v0", "v_lshrrev_b32 v2, 6, v0", "v_and_b32 v3, 15, v0", "v_bfe_u32 v4, v0, 4, 2",
      "v_bfe_u32 v5, v0, 2, 2", "v_and_b32 v6, 3, v0", f"v_readfirstlane_b32 s{sWAVE}, v2",
      "v_and_b32 v12, 7, v0", "v_lshrrev_b32 v13, 3, v0", "v_mov_b32 v15, 0")
    p("s_and_b32 s44, s2, 7", "s_lshl_b32 s44, s44, 2", "s_bfe_u32 s45, s2, 0x20003", "s_or_b32 s44, s44, s45", "s_lshr_b32 s45, s2, 5")
    p(f"s_lshl_b32 s{sWOFF}, s{sWAVE}, 12")
    p("v_lshlrev_b32 v7, 1, v4", "v_xor_b32 v8, v3, v7", "v_xor_b32 v9, 8, v8", "v_lshl_add_u32 v10, v2, 4, v4", "v_lshlrev_b32 v11, 13, v10")
    for t in range(4):
        p(f"v_lshl_add_u32 v{WV+t}, v{8+(t>>1)}, 4, v11")
        if t: p(f"v_add_u32 v{WV+t}, {t*(4*8192-1024)}, v{WV+t}")
    p("v_lshlrev_b32 v11, 8, v10", f"v_lshl_add_u32 v{DV}, v8, 4, v11", f"v_lshl_add_u32 v{DV+1}, v9, 4, v11")
    p("s_waitcnt lgkmcnt(0)")
    srd(p, 36, 40, 41, 256); srd(p, 52, 42, 43, 0x3000000)
    p("s_or_b32 s46, s46, 1", "s_or_b32 s47, s2, s28", "s_cmp_lg_u32 s47, 0", f"s_cbranch_scc1 {name}_nn",
      "v_mov_b32 v14, s46", "buffer_store_dword v14, v15, s[36:39], 0 offen sc1")
    p.label(f"{name}_nn")
    p("s_lshl_b32 s46, s44, 8", f"s_add_u32 s{SW}, s10, s46", f"s_addc_u32 s{SW+1}, s11, 0", f"s_sub_u32 s{SW+2}, 5242880, s46", f"s_mov_b32 s{SW+3}, 0x20000")
    def wq_dma(w):
        return [f"buffer_load_dwordx4 v{WV+t}, {sr(SW,4)}, s47 offen offset:{t*1024} {WQNT} lds" for t in range(4)]
    def wq_early(lo=0, hi=NE):
        out = []
        for w in range(lo, hi):
            out += [f"s_add_u32 m0, s{sWOFF}, {w*16384}", f"s_mov_b32 s47, {w*524288}"] + wq_dma(w)
        return out
    def nonce_load(): return ["buffer_load_dword v14, v15, s[36:39], 0 offen sc1"]
    def nonce_get(lab):
        return [f"{lab}:", "s_waitcnt vmcnt(0)", f"v_readfirstlane_b32 s{sNON}, v14", "s_add_u32 s33, s33, 1", "s_cmp_gt_u32 s33, 0x8000", f"s_cbranch_scc1 {lab}_ok",
                f"s_cmp_lg_u32 s{sNON}, 0", f"s_cbranch_scc1 {lab}_ok"] + nonce_load() + [f"s_branch {lab}", f"{lab}_ok:"]
    SCR = 147456
    p(ST("karg"))
    p("s_mov_b32 s33, 0", "s_lshl_b32 s35, s2, 4", f"s_add_u32 s35, s35, {WS_FP}")
    p("s_cmp_ge_u32 s2, 128", f"s_cbranch_scc1 {name}_cons", "s_cmp_ge_u32 s2, 80", f"s_cbranch_scc1 {name}_idle")
    W0, CK, AC, X = 16, 96, 136, 144
    srd(p, 20, 12, 13, 1280); srd(p, 24, 14, 15, 4915200)
    p("s_cmp_ge_u32 s2, 20", "s_cselect_b32 s30, 1, 0", "s_cmp_ge_u32 s2, 40", "s_cselect_b32 s30, 0, s30",
      "s_sub_u32 s31, s2, 20", "s_cmp_ge_u32 s2, 20", "s_cselect_b32 s31, s31, s2",
      "s_lshl_b32 s46, s31, 7", f"s_mul_i32 s47, s30, {320*7680}", "s_add_u32 s46, s46, s47", "s_mul_i32 s47, s30, 640",
      "v_mul_u32_u24 v11, 7680, v13", "v_lshl_add_u32 v11, v12, 4, v11", "v_lshlrev_b32 v10, 1, v13")
    if DELE:
        p("s_cmp_lt_u32 s2, 40", f"s_cbranch_scc1 {name}_nodel", ["s_sleep 64"] * DELE)
        p.label(f"{name}_nodel")
    for i in range(20): p(f"buffer_load_ushort v{CK+i}, v10, s[20:23], s47 offen offset:{64*i}")
    for i in range(20):
        if i == 10: p("s_cmp_lt_u32 s2, 40", f"s_cbranch_scc1 {name}_half")
        p(f"buffer_load_dwordx4 {vr(W0+4*i,4)}, v11, s[24:27], s46 offen nt", f"s_add_u32 s46, s46, {32*7680}")
    p.label(f"{name}_half")
    p("s_waitcnt vmcnt(10)", f"s_mov_b32 s46, {f32(-math.log2(math.e))}")
    for h in range(2):
        rg = range(10*h, 10*h + 10)
        for i in rg: p(f"v_lshlrev_b32 v{CK+i}, 16, v{CK+i}")
        for i in rg: p(f"v_mul_f32 v{X+i}, s46, v{CK+i}")
        for i in rg: p(f"v_exp_f32 v{X+i}, v{X+i}")
        for i in rg: p(f"v_add_f32 v{X+i}, 1.0, v{X+i}")
        for i in rg: p(f"v_rcp_f32 v{X+i}, v{X+i}")
        for i in rg: p(f"v_mul_f32 v{X+i}, v{X+i}, v{CK+i}")
        for i in rg: p(f"v_cvt_pk_bf16_f32 v{CK+i}, v{X+i}, 0", f"v_cvt_pk_bf16_f32 v{CK+20+i}, 0, v{X+i}")
    p(ST("a1"), "s_waitcnt vmcnt(0)", ST("a2"), nonce_load())
    for i in range(20):
        if i == 10: p("s_cmp_lt_u32 s2, 40", f"s_cbranch_scc1 {name}_red")
        for j in range(4):
            for h in range(2):
                a = AC + 2*j + h
                p(f"v_dot2_f32_bf16 v{a}, v{W0+4*i+j}, v{CK+20*h+i}, {'v%d' % a if i else 0}")
    p.label(f"{name}_red")
    p("s_nop 2")
    for a in range(AC, AC+8): p(f"v_add_f32_dpp v{a}, v{a}, v{a} row_ror:8 row_mask:0xf bank_mask:0xf")
    for a in range(AC, AC+4): p(f"v_permlane32_swap_b32 v{a}, v{a+4}")
    for a in range(AC, AC+4): p(f"v_add_f32 v{a}, v{a}, v{a+4}")
    for a in range(AC, AC+2): p(f"v_permlane16_swap_b32 v{a}, v{a+2}")
    for a in range(AC, AC+2): p(f"v_add_f32 v{a}, v{a}, v{a+2}")
    p("v_lshlrev_b32 v11, 8, v2", "v_lshl_add_u32 v11, v12, 5, v11", "v_lshl_add_u32 v11, v4, 3, v11", f"v_add_u32 v11, {SCR}, v11", f"ds_write_b64 v11, {vr(AC,2)}",
      "v_lshlrev_b32 v10, 2, v1", f"v_add_u32 v11, {SCR}, v10")
    p(ST("a3"))
    p(nonce_get(f"{name}_n1"))
    p(ST("a4"))
    p("s_waitcnt lgkmcnt(0)", "s_barrier", f"s_cmp_lg_u32 s{sWAVE}, 0", f"s_cbranch_scc1 {name}_wq")
    for w in range(4): p(f"ds_read_b32 v{W0+w}, v11 offset:{256*w}")
    p("s_waitcnt lgkmcnt(0)")
    for a, b in ((0,1),(2,3),(0,2)): p(f"v_add_f32 v{W0+a}, v{W0+a}, v{W0+b}")
    p("s_cmp_ge_u32 s2, 40", f"s_cbranch_scc1 {name}_extra")
    p("s_lshl_b32 s46, s31, 9", "s_mul_i32 s47, s30, 10240", "s_add_u32 s46, s46, s47", f"s_add_u32 s46, s46, {WS_PART}",
      f"v_mov_b32 v{W0+1}, s{sNON}", "v_lshlrev_b32 v10, 3, v1", ST("pa"),
      f"buffer_store_dwordx2 {vr(W0,2)}, v10, {WS}, s46 offen {PSC}", f"s_branch {name}_wq")
    p.label(f"{name}_extra")
    p(f"v_cvt_pk_bf16_f32 v{W0}, 0, v{W0}", f"v_add_f32 v{W0+1}, 1.0, v{W0}", f"v_cvt_pk_bf16_f32 v{W0+1}, 0, v{W0+1}",
      "s_lshl_b32 s46, s31, 8", f"s_add_u32 s46, s46, {WS_MOD}",
      "s_cmp_ge_u32 s31, 40", "s_cselect_b32 s30, 1, 0", "s_cmp_lt_u32 s31, 50", "s_cselect_b32 s30, s30, 0",
      "s_cmp_eq_u32 s30, 1", "s_cselect_b64 vcc, -1, 0", f"v_cndmask_b32 v{W0}, v{W0}, v{W0+1}, vcc",
      f"buffer_store_dword v{W0}, v10, {WS}, s46 offen sc1")
    p("s_cmp_lt_u32 s31, 30", f"s_cbranch_scc1 {name}_pub", "s_cmp_ge_u32 s31, 50", f"s_cbranch_scc1 {name}_pub")
    p("s_sub_u32 s46, s31, 30", "s_sub_u32 s47, s31, 40", "s_cmp_eq_u32 s30, 1", "s_cselect_b32 s46, s47, s46", "s_cselect_b32 s47, 0, 16",
      "s_lshl_b32 s46, s46, 11", "s_add_u32 s46, s46, s47", f"s_add_u32 s46, s46, {WS_CS}",
      "v_lshrrev_b32 v12, 5, v0", "v_lshlrev_b32 v12, 10, v12", "v_lshl_add_u32 v12, v5, 8, v12",
      "v_bfe_u32 v13, v0, 4, 1", "v_lshl_add_u32 v12, v13, 3, v12", "v_lshl_add_u32 v12, v6, 1, v12",
      f"buffer_store_short_d16_hi v{W0}, v12, {WS}, s46 offen sc1")
    p.label(f"{name}_pub")
    p(ST("pa"))
    p(f"v_mov_b32 v14, s{sNON}", "s_waitcnt vmcnt(0)", ST("a5"), f"buffer_store_dword v14, v15, {WS}, s35 offen sc1", f"s_branch {name}_wq")
    p.label(f"{name}_idle")
    if CT:
        p(f"s_mov_b32 s50, {name}_end-{name}-64", "s_mov_b32 s46, 8192", "s_mov_b32 s47, 40960", "buffer_load_dword v17, v16, s[48:51], s46 offen", "buffer_load_dword v18, v16, s[48:51], s47 offen")
    if TLB:
        p("s_sub_u32 s30, s2, 80", "s_lshr_b32 s30, s30, 3", "v_lshlrev_b32 v20, 16, v0", "s_load_dwordx2 s[34:35], s[0:1], 88",
          "s_cmp_ge_u32 s30, 3", f"s_cbranch_scc1 {name}_tl2",
          "s_lshl_b32 s31, s30, 24", f"buffer_load_dword v21, v20, {WS}, s31 offen nt", f"s_branch {name}_tl9")
        p.label(f"{name}_tl2")
        p("s_cmp_eq_u32 s30, 5", f"s_cbranch_scc1 {name}_tl3", "s_cmp_eq_u32 s30, 3", "s_cselect_b32 s20, s6, s8", "s_cselect_b32 s21, s7, s9", "s_mov_b32 s22, 0x1000000", "s_mov_b32 s23, 0x20000",
          "buffer_load_dword v21, v20, s[20:23], 0 offen nt", f"s_branch {name}_tl9")
        p.label(f"{name}_tl3")
        p("s_mov_b32 s23, 0x20000", "s_waitcnt lgkmcnt(0)")
        for lo_, sz in ((90, 5242880), (92, 2211840), (56, 2211840), (58, 2211840), (34, 2621440)):
            p(f"s_mov_b32 s20, s{lo_}", f"s_mov_b32 s21, s{lo_+1}", f"s_mov_b32 s22, {sz}", "buffer_load_dword v21, v20, s[20:23], 0 offen nt")
        p.label(f"{name}_tl9")
        p("s_waitcnt lgkmcnt(0)")
    p(nonce_load(), nonce_get(f"{name}_n2"))
    p.label(f"{name}_wq")
    if DEL: p(["s_sleep 64"] * DEL)
    p(wq_early(), f"s_branch {name}_join")
    p.label(f"{name}_cons")
    XR, XF, PS = 16, 36, 80
    srd(p, 20, 4, 5, 2621440)
    p("s_sub_u32 s31, s2, 128", "s_mul_i32 s31, s31, 20480",
      "v_mul_u32_u24 v11, 1280, v3", "v_mul_u32_u24 v10, 320, v2", "v_add_u32 v11, v11, v10", "v_lshl_add_u32 v11, v4, 4, v11")
    for i in range(5): p(f"buffer_load_dwordx4 {vr(XR+4*i,4)}, v11, s[20:23], s31 offen offset:{64*i} {XNT}")
    p(ST("a1"), "v_mov_b32 v13, 0x3f803f80", "s_waitcnt vmcnt(0)", ST("a2"), nonce_load())
    for i in range(20):
        p(f"v_dot2_f32_bf16 v12, v{XR+i}, v13, {'v12' if i else 0}", f"v_dot2_f32_bf16 v10, v{XR+i}, v{XR+i}, {'v10' if i else 0}")
    p("v_permlane32_swap_b32 v12, v10", "v_add_f32 v12, v12, v10", "v_mov_b32 v10, v12", "v_permlane16_swap_b32 v12, v10", "v_add_f32 v12, v12, v10")
    p("v_lshlrev_b32 v11, 7, v2", "v_lshl_add_u32 v11, v3, 3, v11", "v_lshrrev_b32 v10, 5, v1", "v_lshl_add_u32 v11, v10, 2, v11", f"v_add_u32 v11, {SCR}, v11", "ds_write_b32 v11, v12")
    for i in range(20):
        p(f"v_lshlrev_b32 v{XF+2*i}, 16, v{XR+i}", f"v_and_b32 v{XF+2*i+1}, 0xffff0000, v{XR+i}")
    p("s_waitcnt lgkmcnt(0)", "s_barrier", "v_lshlrev_b32 v11, 3, v3", f"v_add_u32 v11, {SCR}, v11")
    a = PS
    for w in range(4): p(f"ds_read_b64 {vr(a+2*w,2)}, v11 offset:{128*w}")
    p("s_waitcnt lgkmcnt(0)")
    for x, y in ((0,2),(4,6),(0,4)): p(f"v_pk_add_f32 {vr(a+x,2)}, {vr(a+x,2)}, {vr(a+y,2)}")
    p(f"v_mul_f32 v{a}, {f32(1/640)}, v{a}", f"v_mul_f32 v{a+1}, {f32(1/640)}, v{a+1}", f"v_fma_f32 v{a+1}, -v{a}, v{a}, v{a+1}",
      f"v_max_f32 v{a+1}, 0, v{a+1}", f"v_add_f32 v{a+1}, {f32(1e-5)}, v{a+1}", f"v_rsq_f32 v{a+2}, v{a+1}", f"v_mul_f32 v{a}, v{a}, v{a+2}", f"v_sub_f32 v{a}, 0, v{a}")
    for i in range(0, 40, 2):
        p(f"v_pk_fma_f32 {vr(XF+i,2)}, {vr(XF+i,2)}, {vr(a+2,2)}, {vr(a,2)} op_sel_hi:[1,0,0]")
    p(ST("a3"))
    p(nonce_get(f"{name}_n3"))
    p(ST("a4"))
    p(wq_early(0, CW))
    p("v_min_u32 v10, 39, v1", "v_mul_u32_u24 v11, 1280, v2", "v_lshl_add_u32 v11, v10, 5, v11",
      f"s_mov_b32 s30, {WS_PART}", f"s_mov_b32 s34, {WS_PART+10240}", f"s_mov_b32 s46, {WS_PART+5120}", f"s_mov_b32 s47, {WS_PART+15360}",
      "v_mul_u32_u24 v12, 1280, v2", f"v_add_u32 v12, {SCR+1024}, v12", "v_lshl_add_u32 v13, v4, 5, v12", "v_lshl_add_u32 v12, v10, 4, v12", "s_mov_b32 s33, 0")
    GR = 128
    p.label(f"{name}_pa")
    for k_, so in enumerate(("s30", "s34", "s46", "s47")):
        p(f"buffer_load_dwordx4 {vr(GR+8*k_,4)}, v11, {WS}, {so} offen {PSC}", f"buffer_load_dwordx4 {vr(GR+8*k_+4,4)}, v11, {WS}, {so} offen offset:16 {PSC}")
    p("s_add_u32 s33, s33, 1", "s_waitcnt vmcnt(0)")
    check(p, [GR + 2*i + 1 for i in range(16)])
    p(f"s_cbranch_vccz {name}_pa_ok", "s_cmp_gt_u32 s33, 0x8000", f"s_cbranch_scc1 {name}_pa_ok", f"s_sleep {PSL}", f"s_branch {name}_pa")
    p.label(f"{name}_pa_ok")
    p(ST("pa"))
    for i in range(4):
        p(f"v_add_f32 v{PS+i}, v{GR+2*i}, v{GR+8+2*i}", f"v_add_f32 v{PS+8+i}, v{GR+16+2*i}, v{GR+24+2*i}",
          f"v_cvt_pk_bf16_f32 v{PS+i}, 0, v{PS+i}", f"v_cvt_pk_bf16_f32 v{PS+8+i}, 0, v{PS+8+i}", f"v_add_f32 v{PS+8+i}, 1.0, v{PS+8+i}",
          f"v_mul_f32 v{PS+i}, {f32(QSCALE)}, v{PS+i}", f"v_cvt_pk_bf16_f32 v{PS+8+i}, 0, v{PS+8+i}", f"v_mul_f32 v{PS+8+i}, {f32(QSCALE)}, v{PS+8+i}")
    p(f"ds_write_b128 v12, {vr(PS,4)}", f"ds_write_b128 v12, {vr(PS+8,4)} offset:640", "s_waitcnt lgkmcnt(0)")
    for i in range(10):
        o_ = 128*(i//2) + 16*(i%2)
        p(f"ds_read_b128 {vr(PS+4*i,4)}, v13 offset:{o_}", f"ds_read_b128 {vr(PS+40+4*i,4)}, v13 offset:{640 + o_}")
    p("v_mul_u32_u24 v11, 5120, v2", "v_lshl_add_u32 v11, v1, 4, v11", f"s_add_u32 s31, s31, {WS_H1}", "s_add_u32 s30, s31, 4096")
    for t in range(5):
        p(f"s_waitcnt lgkmcnt({min(15, 16 - 4*t)})")
        for i in range(8*t, 8*t + 8, 2):
            p(f"v_pk_fma_f32 {vr(XF+i,2)}, {vr(XF+i,2)}, {vr(PS+40+i,2)}, {vr(PS+i,2)}")
        for i in range(4*t, 4*t + 4):
            p(f"v_cvt_pk_bf16_f32 v{XR+i}, v{XF+2*i}, v{XF+2*i+1}")
        p(f"buffer_store_dwordx4 {vr(XR+4*t,4)}, v11, {WS}, s{31 if t < 4 else 30} offen offset:{1024*(t%4)} sc1")
    p(ST("a6"), "s_sub_u32 s35, s2, 128", "s_lshl_b32 s35, s35, 2", f"s_add_u32 s35, s35, s{sWAVE}", "s_lshl_b32 s35, s35, 7", f"s_add_u32 s35, s35, {WS_GH}",
      f"v_mov_b32 v14, s{sNON}", "s_waitcnt vmcnt(0)", f"buffer_store_dword v14, v15, {WS}, s35 offen sc1")
    p(wq_early(CW, NE))
    p.label(f"{name}_join")
    p(ST("a7"))
    p.vm = []
    for i in range(4): p(f"s_mov_b32 s{sH4+i}, {4096*(i+1)}")
    p(f"s_mov_b32 s{sTHR}, 0x53800000")
    p("v_mul_u32_u24 v11, 81920, v2", "v_lshl_add_u32 v11, v1, 4, v11")
    for q in range(4): p(f"v_add_u32 v{HV+q}, {q*20480}, v11")
    p("s_lshl_b32 s46, s44, 19",
      f"s_add_u32 s{SV}, s8, s46", f"s_addc_u32 s{SV+1}, s9, 0", f"s_mov_b32 s{SV+2}, 0x80000", f"s_mov_b32 s{SV+3}, 0x20000",
      f"s_add_u32 s{SK}, s6, s46", f"s_addc_u32 s{SK+1}, s7, 0", f"s_mov_b32 s{SK+2}, 0x80000", f"s_mov_b32 s{SK+3}, 0x20000",
      "s_mul_i32 s46, s45, 327680", f"s_add_u32 s46, s46, {WS_H1}",
      f"s_add_u32 s{SH}, s42, s46", f"s_addc_u32 s{SH+1}, s43, 0", f"s_mov_b32 s{SH+2}, 327680", f"s_mov_b32 s{SH+3}, 0x20000",
      "s_lshl_b32 s46, s45, 21", f"s_add_u32 s46, s46, {WS_AO}",
      f"s_add_u32 s{SO}, s42, s46", f"s_addc_u32 s{SO+1}, s43, 0", f"s_mov_b32 s{SO+2}, 0x200000", f"s_mov_b32 s{SO+3}, 0x20000")
    p("v_and_b32 v7, 7, v3", "v_lshlrev_b32 v7, 1, v7", "v_xor_b32 v7, v4, v7", "v_lshlrev_b32 v8, 8, v3")
    for ks in range(4): p(f"v_xor_b32 v9, {4*ks}, v7", f"v_lshl_add_u32 v{KA+ks}, v9, 4, v8")
    p("v_lshl_add_u32 v7, v4, 2, v5", "v_and_b32 v8, 7, v7", "v_lshlrev_b32 v7, 8, v7")
    p("v_lshl_add_u32 v9, v6, 3, v7", f"v_add_u32 v9, {VBASE}, v9")
    for db in range(8): p(f"v_xor_b32 v10, {db}, v8", f"v_lshl_add_u32 v{VA+db}, v10, 5, v9")
    p("v_lshlrev_b32 v8, 1, v8", "v_xor_b32 v8, v6, v8", "v_lshl_add_u32 v7, v4, 10, v7")
    for t in range(4):
        p(f"v_xor_b32 v10, {4*t}, v8", f"v_lshl_add_u32 v{WA+t}, v10, 4, v7", f"v_add_u32 v{WA+4+t}, 0x10000, v{WA+t}", f"v_add_u32 v{WA+8+t}, 0x20000, v{WA+t}")
    p("v_lshlrev_b32 v7, 19, v2", "v_lshl_add_u32 v7, v1, 4, v7", "s_lshl_b32 s46, s44, 12", f"v_add_u32 v{OV}, s46, v7")
    QKORD[0] = QO
    if O4:
        p("v_cmp_eq_u32 vcc, 0, v6", "v_mov_b32 v7, 0x3f803f80", [f"v_cndmask_b32 v{ONES+i}, 0, v7, vcc" for i in range(4)])
    else:
        for i in range(4): p(f"v_mov_b32 v{ONES+i}, 0x3f803f80")
    p("s_lshr_b32 s46, s2, 3", "s_and_b32 s47, s2, 7", "s_mul_i32 s60, s47, 27", "s_add_u32 s60, s60, s46",
      "s_add_u32 s61, s60, 4", "s_cmp_ge_u32 s60, 108", "s_cselect_b32 s61, s61, s60",
      "s_lshr_b32 s62, s47, 2", "s_mul_i32 s62, s62, 112", "s_and_b32 s47, s47, 3", "s_add_u32 s62, s62, s47", "s_add_u32 s62, s62, 108",
      "s_cmp_ge_u32 s46, 27", "s_cselect_b32 s62, s62, s61", f"s_cselect_b32 s60, {OOB >> 6}, s60",
      "s_sub_u32 s61, s62, 112", "s_cmp_ge_u32 s62, 112", "s_cselect_b32 s61, s61, s62", "s_cselect_b32 s48, s58, s56", "s_cselect_b32 s49, s59, s57",
      "s_cselect_b32 s57, 7168, 0", "s_mov_b32 s50, 2211840", "s_mov_b32 s51, 0x20000",
      "s_mul_i32 s58, s61, 9363", "s_lshr_b32 s58, s58, 16", "s_mul_i32 s59, s58, 7", "s_sub_u32 s59, s61, s59",
      "s_and_b32 s46, s58, 1", "s_sub_u32 s59, s59, s46", "s_cselect_b32 s59, 6, s59",
      "s_mul_i32 s58, s58, 286720", "s_lshl_b32 s59, s59, 10", "s_add_u32 s57, s57, s58", "s_add_u32 s57, s57, s59",
      f"s_mul_i32 s58, s{sWAVE}, 71680", "s_add_u32 s57, s57, s58", f"s_add_u32 s57, s57, {WS_GUF}",
      "s_lshl_b32 s56, s61, 5", f"s_mul_i32 s58, s{sWAVE}, {5*110592}", "s_add_u32 s56, s56, s58",
      "s_cmp_ge_u32 s2, 224", f"s_cselect_b32 s56, {OOB}, s56", f"s_cselect_b32 s57, {OOB}, s57",
      f"s_mul_i32 s58, s{sWAVE}, 5120", f"s_add_u32 s58, s58, {WS_CS}", "s_mov_b32 s59, 3456", "s_mov_b32 s94, 110592", "s_mov_b32 s95, 14336",
      "s_mov_b32 s96, s90", "s_mov_b32 s97, s91", "s_mov_b32 s98, 5242880", "s_mov_b32 s99, 0x20000",
      "s_lshr_b32 s46, s2, 1", "s_and_b32 s47, s2, 1", "s_lshl_b32 s47, s47, 2", f"s_add_u32 s47, s47, s{sWAVE}",
      "s_mul_i32 s61, s46, 40960", "s_mul_i32 s63, s47, 160", "s_add_u32 s61, s61, s63", f"s_and_b32 s6, s{sWAVE}, 1", "s_lshl_b32 s63, s6, 5", "s_add_u32 s61, s61, s63", "s_mul_i32 s6, s6, 160",
      "s_mul_i32 s63, s47, 655360", "s_mul_i32 s46, s46, 5120", "s_add_u32 s63, s63, s46", f"s_add_u32 s63, s63, {WS_WOF}",
      "s_mul_i32 s46, s2, 6554", "s_lshr_b32 s46, s46, 16", "s_mul_i32 s47, s46, 10", "s_sub_u32 s47, s2, s47", "s_lshl_b32 s47, s47, 2", f"s_add_u32 s47, s47, s{sWAVE}",
      "s_mul_i32 s46, s46, 40960", "s_lshl_b32 s90, s47, 5", "s_add_u32 s90, s90, s46", "s_lshl_b32 s91, s47, 10", "s_add_u32 s91, s91, s46", f"s_add_u32 s91, s91, {WS_WDF}",
      "s_cmp_ge_u32 s2, 180", f"s_cselect_b32 s90, {OOB}, s90", f"s_cselect_b32 s91, {OOB}, s91",
      "s_lshr_b32 s101, s2, 1", "s_lshl_b32 s101, s101, 2", "s_and_b32 s46, s2, 1", "s_lshl_b32 s46, s46, 11", "s_add_u32 s101, s101, s46", f"s_add_u32 s101, s101, {WS_F0}", f"s_cmp_eq_u32 s{sWAVE}, 0", f"s_cselect_b32 s101, s101, {OOB}", f"s_mov_b32 s100, {OOB}",
      f"s_lshl_b32 s62, s{sWAVE}, 11", "s_add_u32 s62, s62, 0x20000")
    p(f"v_lshrrev_b32 v{JROW}, 1, v1", f"v_and_b32 v{JC16}, 1, v1", f"v_lshlrev_b32 v{JC16}, 4, v{JC16}",
      f"v_mul_u32_u24 v{JVB}, 1280, v{JROW}", f"v_add_u32 v{JVB}, v{JVB}, v{JC16}", f"v_lshlrev_b32 v{JL16}, 4, v1",
      f"v_mov_b32 v{JTV}, 0", f"v_mov_b32 v{JTD}, s{sNON}",
      "v_lshl_add_u32 v7, v4, 2, v5", "v_lshlrev_b32 v7, 5, v7", "v_lshl_add_u32 v7, v6, 3, v7", f"v_add_u32 v{JTR}, s62, v7")
    def w_reads(s):
        w = s // 2; base = w * 16384 + (s % 2) * 8192; st = base >> 16; base &= 0xffff
        par = s & 1
        return [f"ds_read_b64_tr_b16 {ar(VF+32*par+4*T+2*rd,2)}, v{WA+4*st+T//2} offset:{base + rd*1024 + (T&1)*8}" for T in range(8) for rd in range(2)]
    p("v_lshlrev_b32 v7, 7, v3", "s_lshl_b32 s46, s45, 2", f"s_add_u32 s46, s46, s{sWAVE}", "s_lshl_b32 s46, s46, 11", f"s_add_u32 s46, s46, {WS_GH}",
      "v_min_u32 v12, 39, v1", "v_lshlrev_b32 v12, 4, v12")
    p(ST("a8"))
    p(f"buffer_load_dword v8, v7, {WS}, s46 offen sc1", "s_waitcnt vmcnt(1)", "s_barrier", w_reads(0), "s_waitcnt vmcnt(0)")
    check(p, [8])
    p(f"s_cbranch_vccz {name}_pb_ok")
    poll(p, f"{name}_pb", [(8, 7, "s46")], sleep=PSL2)
    p(ST("pb"))
    def h_load(s, q):
        so = "0" if s < 4 else f"s{sH4 + s//4 - 1}"
        return f"buffer_load_dwordx4 {ar(((s%8)*4+q)*4,4)}, v{HV+q}, {sr(SH,4)}, {so} offen offset:{(s%4)*1024} sc1"
    for s in range(LEAD):
        for q in range(4): p.vmem(h_load(s, q), f"H{s}_{q}")
    p(f"s_waitcnt vmcnt({p.vmwait_n(['H0_0'])}) lgkmcnt(0)")
    mf = []; tasks = []
    bars = {7: "", 13: "", 17: ",K0", 19: ",V0"}
    dmas = {8: ("K", 0), 10: ("K", 1), 12: ("K", 2), 13: ("V", 0), 15: ("V", 1), 17: ("V", 2), 19: ("K", 3)}
    for i_, w_ in enumerate(range(NE, 10)):
        dmas[i_ + 1] = ("W", w_)
        bs = max(b_ for b_ in bars if b_ <= 2*w_ - 1)
        assert bs > i_ + 2
        bars[bs] += f",W{w_}"
    for s in range(20):
        b = 32 * s
        for q in range(4):
            for T in range(8):
                d = vr(ACC + 32*q + 4*T, 4)
                mf.append(f"{MM} {d}, {ar(VF+32*(s&1)+4*T,4)}, {ar(((s%8)*4+q)*4,4)}, {d if s else 0}")
        for q in range(4):
            ns, nq = (s, q+1) if q < 3 else (s+1, 0)
            if ns < 20:
                lg = " lgkm" if q == 3 else ""
                tags = f"H{ns}_{nq}"
                if q == 3 and ns in bars:
                    tasks.append(Task(f"WAITVM {tags}{bars[ns]}{lg}", "s", lo=b+8*q+6, hi=b+8*q+6))
                    tasks.append(Task("s_barrier", "s", lo=b+8*q+7, hi=b+8*q+7))
                else:
                    tasks.append(Task(f"WAITVM {tags}{lg}", "s", lo=b+8*q+7, hi=b+8*q+7))
        for x in ST(f"q{s}"): tasks.append(Task(x, "s", lo=b, hi=b+4))
        rd = w_reads(s+1) if s < 19 else v_reads(0)
        if s == 17: rd = rd + k_reads(0)
        if s == 18: rd = rd + k_reads(1)
        prev = None
        for x in rd:
            t = Task(x, "ds", lo=b, hi=b+27, after=[prev] if prev else []); tasks.append(t); prev = t
        for q in range(4):
            if s + LEAD < 20:
                tasks.append(Task(h_load(s+LEAD, q), "vm", lo=b+8*q+1, hi=b+8*q+1, tag=f"H{s+LEAD}_{q}"))
            if s >= 12:
                for i in range(4):
                    tasks.append(Task(f"v_accvgpr_write_b32 a{((s%8)*4+q)*4+i}, 0", "a", lo=b+8*q+7, hi=b+8*q+60))
        if s in dmas:
            kind, tl = dmas[s]
            if kind == "W": dm = (f"s_add_u32 m0, s{sWOFF}, {tl*16384}", f"s_mov_b32 s47, {tl*524288}", wq_dma(tl))
            else: dm = (f"s_add_u32 m0, s{sWOFF}, {tl*16384 + (VBASE if kind == 'V' else 0)}", f"s_mov_b32 s47, {tl*16384}", kv_dma(SK if kind == "K" else SV, "s47"))
            tasks += [Task(dm[0], "s", lo=b+2, hi=b+2), Task(dm[1], "s", lo=b+3, hi=b+3)]
            for i, x in enumerate(dm[2]): tasks.append(Task(x, "vm", lo=b+8*i+5, hi=b+8*i+5, tag=f"{kind}{tl}"))
    b = len(mf)
    for q in range(4):
        for t in range(4):
            for j in range(4):
                a = ACC + 32*q + 8*t + 2*j
                tasks.append(Task(f"v_cvt_pk_bf16_f32 v{Q0+16*q+4*t+j}, v{a}, v{a+1}", "a", lo=b-32+8*q+7+4, hi=b+8*q-2 if q else b-3))
    for q in range(4): mf += qk_mfmas(0, q, first=True)
    tasks.append(Task("s_waitcnt lgkmcnt(0)", "s", lo=b-1, hi=b-1))
    lastcvt = [t for t in tasks if t.text.startswith("v_cvt_pk_bf16_f32")]
    chain_end = {}
    for q in range(4):
        t0 = X0 + 2*q; t1 = t0 + 1
        seq = [f"v_max3_f32 v{t0}, {S(q,0)}, {S(q,1)}, {S(q,2)}", f"v_max3_f32 v{t0}, v{t0}, {S(q,3)}, {S(q,4)}",
               f"v_max3_f32 v{t0}, v{t0}, {S(q,5)}, {S(q,6)}", f"v_max_f32 v{t0}, v{t0}, {S(q,7)}"] + xmax(t0, t1)
        prev = None
        for x in seq:
            t = Task(x, "a", lo=b+8*q+7+4, hi=b+40, after=([prev] if prev else []) + lastcvt); tasks.append(t); prev = t
        subs = []
        for i in range(8):
            t = Task(f"v_sub_f32 {S(q,i)}, {S(q,i)}, v{t0}", "a", hi=b+50, after=[prev]); tasks.append(t); subs.append(t)
        for i in range(4): tasks.append(Task(f"v_sub_f32 v{NM(q)+i}, 0, v{t0}", "a", after=[prev]))
        chain_end[q] = subs
    for i in range(8): tasks.append(Task(f"v_mov_b32 v{L(1,2)+i}, 0", "a", lo=b, after=lastcvt))
    for i in range(4): tasks.append(Task(f"v_mov_b32 v{JD+i}, 0", "a", lo=32*16, hi=32*18))
    prevc = []
    for q in range(3):
        es = []
        for i in range(8):
            t = Task(exp_i(q, i), "e", after=[chain_end[q][i]] + prevc); tasks.append(t); es.append(t)
        prevc = []
        for i in range(4):
            t = Task(cvt_i(q, i), "a", after=[es[2*i], es[2*i+1]]); tasks.append(t); prevc.append(t)
    late = [f"s_mov_b32 s{sTILE}, {3*16384}", f"s_mov_b32 s{sCNT}, 0",
      "s_and_b32 s20, s2, 1", "s_mul_i32 s21, s20, 2621440",
      "s_bfe_u32 s7, s2, 0x20003", "s_mul_i32 s7, s7, 655360", "s_add_u32 s7, s7, s21", f"s_mul_i32 s22, s{sWAVE}, 163840", "s_add_u32 s7, s7, s22", f"s_add_u32 s7, s7, {WS_WOF}",
      f"s_sub_u32 s22, s7, s{sWOFF}", f"s_add_u32 s22, s22, {16*5120}", "s_add_u32 s38, s42, s22 !! s_addc_u32 s39, s43, 0", "s_add_u32 s40, s38, 4096 !! s_addc_u32 s41, s39, 0",
      "s_lshl_b32 s36, s20, 11", f"s_add_u32 s36, s36, {WS_F0}", "s_mov_b32 s22, 16384", "s_mov_b32 s23, 0", "v_lshlrev_b32 v7, 3, v1", "s_mov_b32 s45, 99",
      "s_mov_b32 s16, s4", "s_mov_b32 s17, s5", "s_mov_b32 s18, 2621440",
      "s_bfe_u32 s33, s2, 0x20001", "s_lshl_b32 s33, s33, 3", "s_lshr_b32 s34, s2, 5", "s_add_u32 s33, s33, s34", "s_mul_i32 s33, s33, 81920",
      "s_bfe_u32 s34, s2, 0x20003", "s_lshl_b32 s35, s20, 2", "s_add_u32 s35, s35, s34", "s_mul_i32 s35, s35, 160", "s_add_u32 s33, s33, s35",
      "s_and_b32 s34, s34, 1 !! s_cselect_b32 s35, 0, 128", "s_lshl_b32 s34, s34, 5", "s_add_u32 s34, s34, s33", "s_add_u32 s35, s35, s33",
      "v_lshl_add_u32 v8, v2, 4, v3", "v_mul_u32_u24 v8, 1280, v8", "v_lshl_add_u32 v8, v4, 3, v8"]
    tasks.append(Task(f"s_mov_b32 s46, {WS_FP + 640}", "s", lo=32*11+8, hi=32*11+8))
    tasks.append(Task(f"buffer_load_dword v13, v12, {WS}, s46 offen sc1", "vm", lo=32*11+13, hi=32*11+13, tag="EF"))
    prev = None
    for x in late:
        t = Task(x, "s" if x.startswith("s_") else "a", lo=32*(21-LEAD), hi=32*19+20, after=[prev] if prev else []); tasks.append(t); prev = t
    for nb in range(5):
        t = Task(f"buffer_load_dwordx2 {vr(234+2*nb,2)}, v8, s[16:19], s{34 if nb < 4 else 35} offen offset:{32*(nb%4)}", "vm", lo=b+1+3*nb, hi=b+1+3*nb, after=[prev], tag="XL"); tasks.append(t)
    prev = t
    for x in ["s_mov_b32 s16, 1280", "s_mov_b32 s17, 1", "s_mov_b32 s18, 32", "s_lshr_b32 s19, s2, 3", "s_lshl_b32 s19, s19, 2", f"s_add_u32 s19, s19, s{sWAVE}", "s_mul_i32 s19, s19, 20480",
              "s_add_u32 s19, s19, s21", f"s_add_u32 s19, s19, {WS_WOF if TW else OOB}"]:
        t = Task(x, "s", after=[prev]); tasks.append(t); prev = t
    emit_sched(p, schedule(mf, tasks))
    p(f"{MM} {vr(L(0,0),4)}, {vr(ONES,4)}, {vr(P(0),4)}, 0", f"{MM} {vr(L(0,1),4)}, {vr(ONES,4)}, {vr(P(1),4)}, 0")
    p(ST("qend"))
    check(p, [13])
    p(f"s_cbranch_vccz {name}_pe_ok")
    save = list(p.vm)
    poll(p, f"{name}_pe", [(13, 12, "s46")])
    p.vm = save
    p(f"s_waitcnt vmcnt({p.vmwait_n(['K1','V1'])}) lgkmcnt(0)", "s_barrier")
    pro = fix_hazards(p.lines)
    loop, sites, cut = attn_loop(name, EL, DBG, GA, BG)
    p = Prog()
    p.label(f"{name}_tail")
    p(ST("tail"))
    import phases
    cold = phases.tail_and_rest(p, name, sites, ST, stamp, NW_A, NW_B, NW4, NE3, EP, **kw)
    pre_ctx = [x for x in loop[:cut] if not (x.endswith(":") or x.startswith("."))][-24:]
    rest = fix_hazards(pre_ctx + p.lines)[len(pre_ctx):]
    bad = check_linear(pro + loop + loop, "main") + check_linear(loop[:cut] + rest, "tail")
    assert bad == 0
    p.lines = pro + loop + rest + rare_code(name, sites) + fix_hazards(cold)
    return p.text(), dict(vgpr=512, acc=256, sgpr=102, lds=163840, grid=256, block=256)

def attn_loop(name, EL=True, DBG=0, GA=15, BG=15):
    sites = []
    def unit(n, q):
        oq = (q + 2) % 4; opar = (n + 1) & 1 if q >= 2 else n & 1
        sq = (q + 3) % 4
        m = [ones_mfma(opar, oq)] + qk_mfmas((n + 1) & 1, q) + pv_mfmas(n & 1, q)
        sal = [[] for _ in range(17)]; lo = [[] for _ in range(17)]; va = [[] for _ in range(17)]
        site = len(sites); sites.append((opar, oq))
        cmp_ = f"v_cmp_lt_f32 vcc, s{sTHR}, v{L(opar,oq)}"
        br = [f"s_cbranch_vccnz {name}_rs{site}", f"{name}_rb{site}:"]
        if q < 3:
            rd = (v_reads(n+1) + k_reads(n+2))[8*q:8*q+8]
            eg = [0, 1, 4, 5, 8, 9, 13, 14]; dg = [2, 3, 6, 7, 10, 12, 15, 16]
            for i, g in enumerate(eg): va[g].append(exp_i(sq, i))
            for i, g in enumerate(dg): lo[g].append(rd[i])
            va[2].append(cvt_i(sq, 0)); va[6].append(cvt_i(sq, 1)); va[10].append(cvt_i(sq, 2)); va[15].append(cvt_i(sq, 3))
            va[7].append(cmp_); sal[11] += br if not DBG & 512 else br[1:]
        else:
            odd = n & 1
            dm = kv_dma(SK if odd else SV, f"s{sTILE}")
            sal[0].append(f"s_add_u32 m0, s{sWOFF}, {((n//2) % 4)*16384 if odd else ((n//2 + 3) % 4)*16384 + VBASE}")
            eg = [0, 2, 4, 6, 9, 10, 11, 12]
            for i, g in enumerate(eg): va[g].append(exp_i(sq, i))
            for i, g in enumerate([1, 3, 5, 7]):
                if not DBG & 256 or i == 0: lo[g].append(dm[i])
            va[8] += [cmp_, cvt_i(sq, 0)]
            va[13] += [cvt_i(sq, 1)]; sal[13] += br
            va[14] += [cvt_i(sq, 2), cvt_i(sq, 3)]
            if odd:
                sal[14].append(f"WAIT {n}"); sal[BG].append("s_barrier" if not DBG & 128 else "s_nop 0")
            else:
                sal[9].append(f"s_add_u32 s{sTILE}, s{sTILE}, s22")
                sal[14].append("s_waitcnt lgkmcnt(0)")
            if n == 6:
                sal[10].append(f"s_add_u32 s{sCNT}, s{sCNT}, 1"); sal[11].append(f"s_cmp_eq_u32 s{sCNT}, 8")
            if n == 0:
                sal[12].append("s_mov_b32 m0, s62")
                lo[GA].append(f"buffer_load_dwordx4 v{JVA}, s[48:51], s56 offen nt lds ;JA")
            if n == 1:
                sal[12].append("s_add_u32 m0, s62, 1024")
                lo[GA].append(f"buffer_load_dwordx4 v{JVB}, s[96:99], s61 offen sc1 lds ;JB")
            if n == 2:
                lo[15].append(f"buffer_load_dwordx2 v[14:15], v7, {WS}, s36 offen sc1 ;JC")
                lo[16].append(f"buffer_load_dwordx4 {vr(JCS,4)}, v{JL16}, {WS}, s58 offen sc1 ;JC")
            if n == 3:
                lo[16].append(f"buffer_store_dword v{JTD}, v{JTV}, {WS}, s100 offen sc1 ;FL")
            if n in (4, 5):
                f = JFA if n == 4 else JFB
                lo[15].append(f"ds_read_b64_tr_b16 {vr(f,2)}, v{JTR} offset:{(n-4)*1024}")
                lo[16].append(f"ds_read_b64_tr_b16 {vr(f+2,2)}, v{JTR} offset:{(n-4)*1024 + 512}")
            if n == 6:
                lo[GA].append(f"buffer_store_dwordx4 {vr(JFA,4)}, v{JL16}, {WS}, s57 offen sc1 ;ST")
                va[16].append(f"{MM} {vr(JD,4)}, {vr(JFA,4)}, {vr(JCS,4)}, {vr(JD,4)}")
            if n == 7:
                lo[GA].append(f"buffer_store_dwordx4 {vr(JFB,4)}, v{JL16}, {WS}, s37 offen sc1 ;ST")
        if n == 0 and q == 0:
            va[3].append(f"v_mad_u32_u24 v{JVA}, v{JROW}, s59, v{JC16}")
            va[12].append(f"v_mul_u32_u24 v{JVB}, s16, v{JROW}")
            va[16].append(f"v_mad_u32_u24 v{JVB}, v{JC16}, s17, v{JVB}")
        if n == 7 and q == 0:
            upd = ["s_mov_b32 s37, s63", "s_add_u32 s56, s56, s94", "s_add_u32 s57, s57, s95", "s_add_u32 s58, s58, 1024", "s_add_u32 s61, s61, s18", "s_add_u32 s63, s63, 1024",
                   f"s_cmp_eq_u32 s{sCNT}, 5", f"s_cselect_b32 s100, s101, {OOB}", f"s_cmp_eq_u32 s{sCNT}, 4", "s_cselect_b32 s44, s6, 0", "s_sub_u32 s61, s61, s44"]
            for i, x in enumerate(upd): sal[i].append(x)
        if n == 7 and q == 1:
            upd = [f"s_cmp_eq_u32 s{sCNT}, 5", "s_cselect_b32 s48, s92, s48", "s_cselect_b32 s49, s93, s49", "s_cselect_b32 s56, s90, s56", "s_cselect_b32 s57, s91, s57",
                   f"s_cselect_b32 s58, {OOB}, s58", "s_cselect_b32 s59, 1280, s59", f"s_cselect_b32 s94, {18*40960}, s94", f"s_cselect_b32 s95, {18*40960}, s95",
                   f"s_cselect_b32 s61, s19, s61", f"s_cselect_b32 s63, {OOB}, s63"]
            for i, x in enumerate(upd): sal[i].append(x)
        if n == 7 and q == 2:
            upd = [f"s_cmp_eq_u32 s{sCNT}, 5", "s_cselect_b32 s96, s52, s96", "s_cselect_b32 s97, s53, s97", "s_cselect_b32 s98, s54, s98",
                   "s_cselect_b32 s16, 256, s16", "s_cselect_b32 s17, 8, s17", "s_cselect_b32 s18, 6144, s18"]
            for i, x in enumerate(upd): sal[i].append(x)
        if DBG & 64:
            if n == 2 and q == 3: sal[2].append("s_memtime s[86:87]")
            if n == 3 and q == 0:
                for i in range(8): sal[i].append(f"s_mov_b32 s{68+2*i}, s{70+2*i}" if i < 7 else "s_mov_b32 s82, s86")
        if n == 6 and q == 0:
            va[3].append(f"v_xor_b32 v14, s{sNON}, v14"); va[12].append(f"v_xor_b32 v15, s{sNON}, v15"); va[16].append("v_or_b32 v14, v14, v15")
        if n == 6 and q == 1:
            va[3].append("v_cmp_ne_u32 s[20:21], 0, v14")
            sal[8].append("s_cmp_eq_u64 s[20:21], 0"); sal[9].append(f"s_cselect_b32 s45, {7 if EL else 60}, 99")
        if n == 1 and q == 0:
            upd = [f"s_cmp_eq_u32 s{sCNT}, s45", f"s_cselect_b32 s{SK}, s38, s{SK}", f"s_cselect_b32 s{SK+1}, s39, s{SK+1}", f"s_cselect_b32 s{SV}, s40, s{SV}", f"s_cselect_b32 s{SV+1}, s41, s{SV+1}",
                   f"s_cselect_b32 s{sTILE}, 0, s{sTILE}", "s_cselect_b32 s22, 8192, s22", "s_cselect_b32 s23, 1, s23"]
            for i, x in enumerate(upd): sal[i].append(x)
        out = []
        for g in range(17):
            out.append(m[g]); out += sal[g] + lo[g] + va[g]
        return out
    loop = [".p2align 6", f"{name}_loop:"]
    for n in range(8):
        loop.append(f";STEP {n}")
        for q in range(4): loop += unit(n, q)
        if n == 6: loop.append(f"s_cbranch_scc1 {name}_tail")
    loop.append(f"s_branch {name}_loop")
    res = []; vmseq = []
    need_side = {3: ["JA", "ST"], 5: ["JB", "JC"]}
    for rep in range(2):
        cur = 0
        for x in loop:
            if x.startswith(";STEP"): cur = int(x.split()[1])
            elif x.startswith("buffer_"): vmseq.append((rep*8 + cur, x.split(";")[1] if ";" in x else ""))
            elif x.startswith("WAIT") and rep == 1:
                lim = 8 + cur - 3
                last = max(i for i, (st_, tg) in enumerate(vmseq) if (st_ <= lim and tg == "") or tg in need_side.get(cur, []))
                res.append(len(vmseq) - 1 - last)
    print("barrier vmcnt", res)
    it = iter(res)
    loop = [f"s_waitcnt vmcnt({next(it)}) lgkmcnt(0)" if x.startswith("WAIT") else x.split(" ;")[0] for x in loop if not x.startswith(";STEP")]
    cut = loop.index(f"s_cbranch_scc1 {name}_tail")
    return loop, sites, cut

def rare_code(name, sites):
    rare = []
    for i, (par, q) in enumerate(sites):
        rare += [f"{name}_rs{i}:", f"s_call_b64 {sr(sRET,2)}, {name}_rare{par}{q}", f"s_branch {name}_rb{i}"]
    for par in range(2):
        for q in range(4):
            t0, t1, sc = X0 + 10, X0 + 11, X0 + 12
            r = ["s_nop 15", f"v_max3_f32 v{t0}, {S(q,0)}, {S(q,1)}, {S(q,2)}", f"v_max3_f32 v{t0}, v{t0}, {S(q,3)}, {S(q,4)}",
                 f"v_max3_f32 v{t0}, v{t0}, {S(q,5)}, {S(q,6)}", f"v_max3_f32 v{t0}, v{t0}, {S(q,7)}, 0"] + xmax(t0, t1)
            r += [f"v_exp_f32_e64 v{sc}, -v{t0}"]
            r += [f"v_sub_f32 {S(q,i)}, {S(q,i)}, v{t0}" for i in range(8)]
            r += [f"v_sub_f32 v{NM(q)+i}, v{NM(q)+i}, v{t0}" for i in range(4)]
            r += [f"v_mul_f32 v{L(1-par,q)+i}, v{L(1-par,q)+i}, v{sc}" for i in range(4)]
            for i in range(32):
                r += [f"v_accvgpr_read_b32 v{t1}, a{O0+32*q+i}", f"v_mul_f32 v{t1}, v{t1}, v{sc}", f"v_accvgpr_write_b32 a{O0+32*q+i}, v{t1}"]
            for i in range(4):
                r += [f"v_exp_f32 v{X0+13}, {S(q,2*i)}", f"v_exp_f32 v{X0+14}, {S(q,2*i+1)}", f"v_cvt_pk_bf16_f32 v{P(q)+i}, v{X0+13}, v{X0+14}"]
            r += [ones_mfma(par, q), "s_nop 15", f"s_setpc_b64 {sr(sRET,2)}"]
            rare += [f"{name}_rare{par}{q}:"] + fix_hazards(r)
    return rare
```

```python
from asmlib import *
from sched import *
from layout import *
from k1 import srd, f32
from k2 import *
import mega
from mega import WS, OOB, sNON, poll, check, set_flag, early_poll

L16, G16 = 5, 6
AV = 10
SA_, SW_, SX_, SY_, SHH = 8, 12, 16, 20, 24
sCT, sRT, sCT4, sRT4 = 56, 57, 58, 59
sK4 = 44
sPAR, sNB4, sPAR4 = 95, 96, 97
AV2 = 232

def groups(spec):
    out = []
    for t, lo, hi in spec:
        out += [vr(r, 4, t) for r in range(lo, hi, 4)]
    return out

def interleave(main, extra, every):
    out = []; k = 0
    for i, x in enumerate(main):
        out.append(x)
        if (i + 1) % every == 0 and k < len(extra):
            out.append(extra[k]); k += 1
    return out, extra[k:]

def emit(p, seq):
    for x in seq:
        if isinstance(x, tuple):
            for y in x[1:-1]: p(y)
            p.vmem(x[-1], x[0])
        elif x.startswith("buffer_"): p.vmem(x, "X")
        else: p(x)

class Skinny:
    def __init__(self, k3, wgroups, wv, acc, aring, acct='a', at='v'):
        self.acct = acct; self.at = at; self.sw = SW_ if k3 else SX_; self.ws0 = 40 if k3 else 34; self.xa = 244
        self.k3 = k3; self.NS = 32 if k3 else 14; self.KST = 128 if k3 else 54
        self.wg = wgroups; self.DW = len(wgroups) // 5; self.wv = wv; self.acc = acc; self.aring = aring; self.DA = 4
    def setup_a(self, av=AV):
        NS, KST = self.NS, self.KST
        self.av = av
        out = [f"v_mul_u32_u24 v7, {NS*1024}, v2", f"v_add_u32 v7, v7, v{L16}"]
        for i in range(4):
            out += [f"v_add_u32 v8, {i}, v2", "v_and_b32 v8, 3, v8", f"v_mul_u32_u24 v8, {KST*1024}, v8", f"v_add_u32 v{av+i}, v8, v7"]
        if not self.k3:
            out += [f"v_lshrrev_b32 v8, 1, v{L16}"] + [f"v_sub_u32 v{AV2+i}, v{av+i}, v8" for i in range(4)]
        out += [f"s_mul_i32 s39, s{sRT}, {4*KST*1024}", f"s_add_u32 s38, s39, {WS_AO if self.k3 else WS_HH}",
                f"s_add_u32 s{SA_}, s42, s38", f"s_addc_u32 s{SA_+1}, s43, 0", f"s_sub_u32 s{SA_+2}, {128*KST*1024}, s39", f"s_mov_b32 s{SA_+3}, 0x20000"]
        return out
    def setup_w(self):
        NS, KST, sw = self.NS, self.KST, self.sw
        return [f"v_mul_u32_u24 v7, {NS*40960}, v2", f"v_add_u32 v7, v7, v{L16}", f"s_lshl_b32 s39, s{sPAR}, 10", f"v_add_u32 v{self.wv}, s39, v7",
                f"s_lshl_b32 s39, s{sNB4}, 10", f"v_add_u32 v{self.wv+1}, s39, v7",
                f"s_mul_i32 s39, s{sCT}, 5120", f"s_add_u32 s38, s39, {WS_WOF if self.k3 else WS_WDF}", f"s_sub_u32 s{sw+2}, {KST*40960}, s39", f"s_mov_b32 s{sw+3}, 0x20000",
                f"s_add_u32 s{sw}, s42, s38 !! s_addc_u32 s{sw+1}, s43, 0"]
    def setup(self):
        out = []
        for x in self.setup_a() + self.setup_w(): out += x.split(" !! ")
        return out
    def wreg(self, s, nb): return self.wg[(s % self.DW)*5 + nb]
    def witem(self, s, nb):
        if self.k3:
            f = 5*s + nb; so = 40 + ((f // 4) & 1)
            ld = f"buffer_load_dwordx4 {self.wreg(s,nb)}, v{self.wv}, {WS}, s{so} offen offset:{(f%4)*1024} sc1"
            return (f"W{s}", f"s_add_u32 s{so}, s7, {(f//4)*4096}", ld) if f % 4 == 0 else (f"W{s}", ld)
        return (f"W{s}", self.wset(s), self.wload(s, nb)) if nb == 0 else (f"W{s}", self.wload(s, nb))
    def wlds(self, s, nb):
        f = 5*(s - 16) + nb; g = f // 4; t = f % 4
        return f"ds_read_b128 {self.wreg(s,nb)}, v{224 + 2*(g&1) + (t&1)} offset:{(g//2)*16384 + t*1024}"
    def wset(self, s): return f"s_mov_b32 s{self.ws0 + (s&1)}, {s*40960}"
    def wload(self, s, nb):
        return f"buffer_load_dwordx4 {self.wreg(s,nb)}, v{self.wv + nb//4}, {sr(self.sw,4)}, s{self.ws0 + (s&1)} offen offset:{(nb%4)*1024} sc1"
    def preload(self):
        out = []
        for s in range(min(self.DW, self.NS)):
            for nb in range(5):
                out.append(self.witem(s, nb))
        return out
    def areg(self, s, i): return vr(self.aring + 16*(s % self.DA) + 4*i, 4, self.at)
    def aload(self, s, i):
        return f"buffer_load_dwordx4 {self.areg(s,i)}, v{self.av+i}, {sr(SA_,4)}, s{sK4 + s//4} offen offset:{(s%4)*1024} sc1"
    def aloads(self, s):
        if not self.k3 and s % 7 == 3:
            r = lambda i: self.aring + 16*(s % self.DA) + 4*i
            return [f"buffer_load_dwordx2 {vr(r(i)+2*h,2,self.at)}, v{AV2+i}, {sr(SA_,4)}, s{sK4 + s//4} offen offset:{(s%4)*1024 + 512*h} sc1" for i in range(4) for h in range(2)]
        return [self.aload(s, i) for i in range(4)]
    def main(self, p, extra, extra_from, mid=None, extra2=None, hook=None):
        NS, DA, DW = self.NS, self.DA, self.DW
        for s in range(DA - 1):
            for x in self.aloads(s): p.vmem(x, f"A{s}")
        p(f"s_waitcnt vmcnt({p.vmwait_n(['A0'])})")
        mf = []; tasks = []
        for s in range(NS):
            b = 20 * s
            for x in self.ST(f"{'m' if self.k3 else 'n'}{s}"): tasks.append(Task(x, "s", lo=b+10, hi=b+18))
            if s == 2:
                prev = None
                for i in range(4):
                    for x in (f"v_add_u32 v8, {i}, v2", "v_and_b32 v8, 3, v8", "v_mul_u32_u24 v8, 15360, v8", f"v_add_u32 v8, v8, v{L16}", f"v_add_u32 v{self.xa+i}, {102400 + max(i-1,0)*5120}, v8"):
                        t = Task(x, "a", lo=b, hi=b+100, after=[prev] if prev else []); tasks.append(t); prev = t
            if s == NS - 1:
                for k_, i in enumerate((1, 2, 3)):
                    for nb in range(5):
                        g = b + 5*k_ + nb + 6
                        tasks.append(Task(f"ds_write_b128 v{self.xa+i}, {vr(self.acc+20*i+4*nb,4,self.acct)} offset:{nb*1024}", "ds", lo=g, hi=g))
            for i in ((1, 2, 3, 0) if s == NS - 1 else range(4)):
                for nb in range(5):
                    d = vr(self.acc + 20*i + 4*nb, 4, self.acct)
                    mf.append(f"{MM} {d}, {self.wreg(s,nb)}, {self.areg(s,i)}, {d if s else 0}")
            vm = []
            n = s + DA - 1
            if n < NS: vm += [(x, f"A{n}") for x in self.aloads(n)]
            n = s - 1 + DW
            if s >= 1 and n < NS:
                for nb in range(5):
                    if self.k3 and 5*n + nb < 104:
                        tasks.append(Task(self.wlds(n, nb), "ds", lo=b+2*nb, hi=b+2*nb)); continue
                    it = self.witem(n, nb)
                    if len(it) == 3: tasks.append(Task(it[1], "s", lo=b+2*len(vm), hi=b+2*len(vm)))
                    vm.append((it[-1], it[0]))
            if mid and s == mid[0]: vm += [(x, "M") for x in mid[1]]
            if extra2 and s == extra2[0]: vm += [(x, "E") for x in extra2[1]]
            if s == extra_from:
                vm += [(x, "E") for x in extra]; extra = []
            if hook: hook(s, b, tasks, vm)
            assert len(vm) <= 9, len(vm)
            for i, (x, tg) in enumerate(vm):
                tasks.append(Task(x, "vm", lo=b+1+2*i, hi=b+1+2*i, tag=tg))
            if s + 1 < NS:
                tg = f"A{s+1}" + (f",W{s+1}" if s + 1 >= max(DW, 20) else "") + (" lgkm" if s == 8 and self.k3 else "")
                tasks.append(Task(f"WAITVM {tg}", "s", lo=b+19, hi=b+19))
        assert not extra
        emit_sched(p, schedule(mf, tasks))
    def exchange_out(self, T):
        return [f"v_accvgpr_read_b32 v{T+j}, a{self.acc+j}" for j in range(20)] if self.acct == "a" else []
    def exchange_in(self, T, R0, U0, XR, G0):
        out = [f"ds_read_b128 {vr(R0+4*j,4)}, v{self.xa} offset:{j*1024}" for j in range(15)]
        for j in range(10): out += [f"v_lshlrev_b32 v{U0+2*j}, 16, v{XR+j}", f"v_and_b32 v{U0+2*j+1}, 0xffff0000, v{XR+j}"]
        for i in range(3):
            out.append(f"s_waitcnt lgkmcnt({10 - 5*i})")
            out += [f"v_pk_add_f32 {vr(T+j,2)}, {vr(T+j,2)}, {vr(R0+20*i+j,2)}" for j in range(0, 20, 2)]
        out += [f"v_pk_fma_f32 {vr(T+j,2)}, {vr(T+j,2)}, {vr(G0+j,2)}, {vr(U0+j,2)}" for j in range(0, 20, 2)]
        out += [f"v_cvt_pk_bf16_f32 v{XR+j}, v{T+2*j}, v{T+2*j+1}" for j in range(10)]
        return out

def wave_flag(p, tag, soff):
    p(f"v_mov_b32 v8, s{sNON}", "v_mov_b32 v9, 0", f"s_waitcnt vmcnt({p.vmwait_n([tag])})")
    p.vmem(f"buffer_store_dword v8, v9, {WS}, {soff} offen sc1", "FL")

def tail_and_rest(p, name, sites, ST, stamp, NW_A, NW_B, NW4=0, NE3=0, EP=(0, 0, 0), NB2=7, NB3=4, W4R=8, LEAD3=4, CT2=True, DSP=0, DBGOUT=0, E3S=28, E3N=7, D3=0):
    s2 = len(sites); sites.append((1, 2)); s3 = len(sites); sites.append((1, 3))
    pv = [pv_mfmas(1, q) for q in range(4)]
    coords = [f"s_bfe_u32 s38, s2, 0x20003", "s_and_b32 s39, s2, 1", "s_lshl_b32 s39, s39, 2", f"s_add_u32 s{sCT}, s39, s38",
              "s_bfe_u32 s39, s2, 0x20001", "s_lshl_b32 s39, s39, 3", "s_lshr_b32 s37, s2, 5", f"s_add_u32 s{sRT}, s39, s37",
              "s_and_b32 s39, s2, 3", "s_lshl_b32 s39, s39, 2", f"s_add_u32 s{sCT4}, s39, s38",
              "s_bfe_u32 s39, s2, 0x10002", "s_lshl_b32 s39, s39, 3", f"s_add_u32 s{sRT4}, s39, s37",
              f"s_and_b32 s{sPAR}, s38, 1", f"s_cselect_b32 s{sNB4}, 0, 4"]
    P2 = Skinny(True, groups([("a", 128, 256), ("v", 80, 144), ("a", 0, 48), ("v", 144, 224)]), JL16, 48, 16)
    P2.ST = ST
    pre = P2.preload()
    c = Prog(); c.label(f"{name}_late")
    c("s_add_u32 s37, s36, 4")
    poll(c, f"{name}_f0", [(14, 7, "s36"), (15, 7, "s37")])
    c(f"s_mov_b32 s{SK}, s38", f"s_mov_b32 s{SK+1}, s39")
    for g in range(6):
        c(f"s_add_u32 m0, s{sWOFF}, {(g//2)*16384 + (g&1)*VBASE}", f"s_mov_b32 s{sTILE}, {g*4096}", kv_dma(SK, f"s{sTILE}"))
    c(f"s_branch {name}_go")
    p("s_cmp_eq_u32 s23, 0", f"s_cbranch_scc1 {name}_late")
    p.label(f"{name}_go")
    assert NW_A <= 24
    early_w = pre[:NW_A]; pre = pre[NW_A:]
    def nw():
        return [early_w.pop(0)] if early_w else []
    seq = [ones_mfma(1, 2)] + nw()
    for i in range(8): seq += [pv[0][i], exp_i(3, i)]
    seq += [pv[1][0], cvt_i(3, 0), cvt_i(3, 1), pv[1][1], cvt_i(3, 2), cvt_i(3, 3), pv[1][2], f"v_cmp_lt_f32 vcc, s{sTHR}, v{L(1,2)}", f"v_mov_b32 v{L16}, v{JL16}",
            ones_mfma(1, 3)] + nw()
    for i in range(3, 8): seq += [pv[1][i]] + nw()
    emit(p, seq)
    p(f"s_cbranch_vccnz {name}_rs{s2}")
    p.label(f"{name}_rb{s2}")
    def norm(q):
        r = X0 + 8
        out = [f"s_mov_b32 s46, {q*131072}", f"v_rcp_f32 v{r}, v{L(1,q)}"]
        for tt in range(4):
            base = Q0 + 16*q + 8*(tt & 1)
            out += [f"v_accvgpr_read_b32 v{base+i}, a{O0+32*q+8*tt+i}" for i in range(8)]
            if q == 0 and tt < 2: out += [f"v_mul_f32 v{base+i}, v{base+i}, v{r}" for i in range(8)]
            else: out += [f"v_pk_mul_f32 {vr(base+i,2)}, {vr(base+i,2)}, {vr(r,2)} op_sel_hi:[1,0]" for i in range(0, 8, 2)]
            dst = T0 + 4*(tt & 1)
            out += [f"v_cvt_pk_bf16_f32 v{dst+i}, v{base+2*i}, v{base+2*i+1}" for i in range(4)]
            out.append(("AO", f"buffer_store_dwordx4 {vr(dst,4)}, v{OV}, {sr(SO,4)}, s46 offen offset:{tt*1024} sc1"))
        return out
    fill = norm(0); k = 0
    seq = [pv[2][0], f"v_cmp_lt_f32 vcc, s{sTHR}, v{L(1,3)}"]
    for i in range(1, 8):
        seq += [pv[2][i]] + nw() + fill[k:k+2]; k += 2
    emit(p, seq)
    p(f"s_cbranch_vccnz {name}_rs{s3}"); p.label(f"{name}_rb{s3}")
    seq = []
    for i in range(8):
        seq += [pv[3][i]] + fill[k:k+2]; k += 2
    seq += fill[k:] + norm(1) + norm(2) + norm(3)
    emit(p, seq)
    pre = early_w + pre
    p(ST("norm"))
    emit(p, pre[:NW_B]); pre = pre[NW_B:]
    U = 208
    p("v_lshlrev_b32 v8, 4, v0", "v_add_u32 v8, 0x25000, v8", f"ds_write_b128 v8, {vr(JD,4)}", f"v_lshlrev_b32 v{G16}, 4, v4",
      f"v_add_u32 v226, {VBASE}, v{DV}", f"v_add_u32 v227, {VBASE}, v{DV+1}",
      "s_lshl_b32 s94, s60, 6", f"s_add_u32 s94, s94, {WS_UW}")
    p(coords, P2.setup_a())
    for j in range(8): p(f"s_mov_b32 s{sK4+j}, {4096*j}")
    p("s_lshr_b32 s36, s2, 5", "s_lshl_b32 s36, s36, 2", f"s_add_u32 s36, s36, s{sWAVE}", "s_lshl_b32 s36, s36, 5", "s_and_b32 s38, s2, 7", "s_lshl_b32 s38, s38, 2", "s_add_u32 s36, s36, s38",
      "s_bfe_u32 s38, s2, 0x20003", "s_add_u32 s36, s36, s38", "s_lshl_b32 s36, s36, 7", f"s_add_u32 s36, s36, {WS_G1}")
    G0, C0, XR = 80, 100, 234
    T, U0, R0 = 16, 36, 144
    RM = 250
    p(f"s_mul_i32 s39, s{sCT}, 320", f"s_add_u32 s60, s39, {WS_MOD + 2*2560}", f"s_add_u32 s61, s39, {WS_MOD + 4*2560}", f"s_add_u32 s62, s39, {WS_MOD + 5*2560}",
      "v_lshl_add_u32 v8, v2, 4, v3", "v_mul_u32_u24 v8, 1280, v8", f"v_lshl_add_u32 v{RM}, v4, 3, v8",
      f"s_mul_i32 s63, s{sRT}, 81920", f"s_mul_i32 s39, s{sCT}, 160", "s_add_u32 s63, s63, s39",
      f"s_lshl_b32 s39, s{sNB4}, 6", "s_add_u32 s98, s60, s39", "s_add_u32 s99, s61, s39", "s_add_u32 s100, s62, s39", f"s_lshl_b32 s39, s{sNB4}, 5", "s_add_u32 s101, s63, s39",
      f"s_lshl_b32 s39, s{sPAR}, 6", "s_add_u32 s60, s60, s39", "s_add_u32 s61, s61, s39", "s_add_u32 s62, s62, s39", f"s_lshl_b32 s39, s{sPAR}, 5", "s_add_u32 s63, s63, s39",
      f"s_mov_b32 s90, {WS_F1}", f"s_mov_b32 s91, {WS_F1+1024}", f"s_mov_b32 s92, {WS_F1+2048}", f"s_mov_b32 s93, {WS_F1+3072}",
      "s_load_dwordx2 s[4:5], s[0:1], 88")
    wave_flag(p, "AO", "s36")
    p(ST("pub1"))
    emit(p, pre[:8]); pre = pre[8:]
    p("s_waitcnt lgkmcnt(0)", "s_barrier", f"v_add_u32 v8, 0x25000, v{L16}", [f"ds_read_b128 {vr(U+4*w,4)}, v8 offset:{w*1024}" for w in range(4)])
    emit(p, pre[:8]); pre = pre[8:]
    p("v_mul_u32_u24 v8, 13824, v3", f"v_add_u32 v8, v8, v{G16}", "v_and_b32 v9, 0xce, v0", "v_cmp_eq_u32 vcc, 0, v9", f"v_mov_b32 v9, {OOB}", "v_cndmask_b32 v8, v9, v8, vcc", "s_waitcnt lgkmcnt(0)")
    for i in (0, 2): p(f"v_pk_add_f32 {vr(U+i,2)}, {vr(U+i,2)}, {vr(U+4+i,2)}", f"v_pk_add_f32 {vr(U+8+i,2)}, {vr(U+8+i,2)}, {vr(U+12+i,2)}")
    for i in (0, 2): p(f"v_pk_add_f32 {vr(U+i,2)}, {vr(U+i,2)}, {vr(U+8+i,2)}")
    p.vmem(f"buffer_store_dwordx4 {vr(U,4)}, v8, {WS}, s94 offen sc1", "UW")
    assert len(pre) > EP[0] + 4
    p("v_and_b32 v7, 7, v1", "v_lshlrev_b32 v7, 7, v7", f"s_lshl_b32 s36, s{sRT}, 2", f"s_add_u32 s36, s36, s{sWAVE}", "s_lshl_b32 s36, s36, 10", f"s_add_u32 s36, s36, {WS_G1}")
    early_poll(p, f"{name}_p1", (14, 7, "s36"), pre, EP[0], emit)
    p("s_lshl_b32 s36, s2, 4", f"s_add_u32 s36, s36, {WS_F1}", f"s_cmp_eq_u32 s{sWAVE}, 0", f"s_cselect_b32 s36, s36, {OOB}", f"v_mov_b32 v8, s{sNON}", "v_mov_b32 v9, 0")
    p.vmem(f"buffer_store_dword v8, v9, {WS}, s36 offen sc1", "FL")
    p(ST("p1"))
    extra = []
    for nb in range(5):
        o = 38 if nb == 4 else 0
        extra += [f"buffer_load_dwordx4 {vr(G0+4*nb,4)}, v{G16}, {WS}, s{60+o} offen offset:{64*(nb%4)} sc1",
                  f"buffer_load_dwordx4 {vr(C0+4*nb,4)}, v{G16}, {WS}, s{61+o} offen offset:{64*(nb%4)} sc1"]
    ct_ = []
    if CT2:
        p("s_getpc_b64 s[16:17]")
        p.label(f"{name}_pc2")
        p(f"s_add_u32 s16, s16, {name}_p2e-{name}_pc2", "s_addc_u32 s17, s17, 0", f"s_mov_b32 s18, {name}_end-{name}_p2e", "s_mov_b32 s19, 0x20000", "v_lshlrev_b32 v232, 7, v0")
        ct_ = ["buffer_load_dword v233, v232, s[16:19], 0 offen"]
    SLOT = 28672; R = 5
    DV3, RA1, RA2, YV, SV3 = 248, 251, 254, 252, 14
    WF3, UW3, STT, BF3, BD, AC3 = 0, 128, 240, 112, 6, 16
    def dma3(st):
        out = []
        for t in range(7):
            pre_ = []
            if t == 0: pre_.append(f"s_mov_b32 s41, {st*SLOT}")
            if t % 4 == 0: pre_.append(f"s_add_u32 m0, s37, {(st % R)*SLOT + t*1024}")
            out.append((f"V{st}", *pre_, f"buffer_load_dwordx4 v{DV3+t//4}, {sr(SW_,4)}, s41 offen offset:{(t%4)*1024} sc1 lds"))
        return out
    early = dma3(0) + dma3(1) + dma3(2)
    def hook(s_, b, tasks, vm):
        if s_ == 10:
            tasks.append(Task("s_barrier", "s", lo=b+17, hi=b+17))
        if s_ == 18:
            prev = None
            for x in ("v_mul_u32_u24 v7, 7168, v2", f"v_add_u32 v{DV3}, v7, v{L16}", f"v_add_u32 v{DV3+1}, 4096, v{DV3}", f"s_mul_i32 s37, s{sWAVE}, 7168",
                      f"s_mul_i32 s39, s{sCT4}, 286720", f"s_add_u32 s39, s39, {WS_GUF}", f"s_add_u32 s{SW_}, s42, s39 !! s_addc_u32 s{SW_+1}, s43, 0",
                      f"s_mov_b32 s{SW_+2}, 286720", f"s_mov_b32 s{SW_+3}, 0x20000"):
                t = Task(x, "s" if x.startswith("s_") else "a", lo=b, hi=b+18, after=[prev] if prev else []); tasks.append(t); prev = t
        if s_ == 26:
            prev = None
            for x in [f"v_xor_b32 v{228+j}, s{sNON}, v{228+j}" for j in range(4)] + ["v_or3_b32 v228, v228, v229, v230", "v_or_b32 v228, v228, v231", "v_cmp_ne_u32 vcc, 0, v228"]:
                t = Task(x, "a", lo=b, hi=b+30, after=[prev] if prev else []); tasks.append(t); prev = t
            tasks.append(Task(f"s_cbranch_vccnz {name}_f1 !! {name}_f1_back:", "b", lo=b, hi=b+38, after=[prev], gapdist=3))
        if s_ >= E3S:
            while early_in and len(vm) < E3N:
                x = early_in.pop(0)
                if len(x) > 2: tasks.append(Task(" !! ".join(x[1:-1]), "s", lo=b+2*len(vm), hi=b+2*len(vm)))
                vm.append((x[-1], x[0]))
    early_in = list(early)
    c.label(f"{name}_f1")
    poll(c, f"{name}_f1p", [(228+j, L16, f"s{90+j}") for j in range(4)])
    c(f"s_branch {name}_f1_back")
    P2.main(p, extra[:5], 27, mid=(22, ct_ + [f"buffer_load_dword v{228+j}, v{L16}, {WS}, s{90+j} offen sc1" for j in range(4)]), extra2=(26, extra[5:]), hook=hook)
    p.label(f"{name}_p2e")
    p(ST("p2end"))
    p(P2.exchange_out(T))
    early = early_in
    p("s_waitcnt lgkmcnt(0)", "s_barrier")
    p(ST("x2"))
    body = P2.exchange_in(T, R0, U0, XR, G0)
    for j in range(10): body += [f"v_lshlrev_b32 v{T+2*j}, 16, v{XR+j}", f"v_and_b32 v{T+2*j+1}, 0xffff0000, v{XR+j}"]
    body += [f"v_pk_mul_f32 {vr(T+j,2)}, {vr(T+j,2)}, {vr(C0+j,2)}" for j in range(0, 20, 2)]
    body += [f"v_cvt_pk_bf16_f32 v{R0+j}, v{T+2*j}, v{T+2*j+1}" for j in range(10)]
    body += [f"s_lshl_b32 s38, s{sRT}, 2", f"s_add_u32 s38, s38, s{sWAVE}", "s_mul_i32 s38, s38, 20480", f"s_add_u32 s38, s38, {WS_Y}",
             f"s_lshr_b32 s39, s{sCT}, 1", "s_mul_i32 s39, s39, 5120", "s_add_u32 s38, s38, s39",
             f"s_mul_i32 s39, s{sPAR}, 3072", "s_add_u32 s36, s38, s39", f"s_lshl_b32 s39, s{sPAR}, 9", "s_add_u32 s38, s38, s39", f"v_lshrrev_b32 v7, 1, v{L16}",
             ("Y", f"buffer_store_dwordx4 {vr(R0,4)}, v{L16}, {WS}, s36 offen sc1"), ("Y", f"buffer_store_dwordx4 {vr(R0+4,4)}, v{L16}, {WS}, s36 offen offset:1024 sc1"),
             ("Y", f"buffer_store_dwordx2 {vr(R0+8,2)}, v7, {WS}, s38 offen offset:2048 sc1")]
    body += ["v_mov_b32 v7, 0x3f803f80"]
    for j in range(10):
        body += [f"v_dot2_f32_bf16 v8, v{XR+j}, v7, {'v8' if j else 0}", f"v_dot2_f32_bf16 v9, v{XR+j}, v{XR+j}, {'v9' if j else 0}"]
    body += [f"v_accvgpr_write_b32 a{240+j}, v{XR+j}" for j in range(10)]
    body += ["v_permlane32_swap_b32 v8, v9", "v_add_f32 v8, v8, v9", "v_mov_b32 v9, v8", "v_permlane16_swap_b32 v8, v9", "v_add_f32 v8, v8, v9",
             "v_lshl_add_u32 v9, v2, 4, v3", "v_lshlrev_b32 v9, 3, v9", "v_lshrrev_b32 v7, 5, v1", "v_lshl_add_u32 v9, v7, 2, v9",
             f"s_lshl_b32 s38, s{sRT}, 12", f"s_lshl_b32 s39, s{sCT}, 9", "s_add_u32 s38, s38, s39", f"s_add_u32 s38, s38, {WS_STATS}",
             ("Y", f"buffer_store_dword v8, v9, {WS}, s38 offen sc1")]
    seq, left = interleave(body, early, 8)
    emit(p, seq); p(ST("epi2")); emit(p, left)
    p(f"s_lshl_b32 s36, s{sRT}, 2", f"s_add_u32 s36, s36, s{sWAVE}", "s_lshl_b32 s36, s36, 3", f"s_add_u32 s36, s36, s{sCT}", "s_lshl_b32 s36, s36, 7", f"s_add_u32 s36, s36, {WS_G2}")
    wave_flag(p, "Y", "s36")
    p(f"s_waitcnt vmcnt({p.vmwait_n(['V0'])})", "s_barrier")
    p([f"ds_read_b128 {ar(WF3+4*f,4)}, v{L16} offset:{f*1024}" for f in range(14)])
    p(ST("pub2"))
    p("v_mul_u32_u24 v7, 40960, v2", f"v_add_u32 v{YV}, v7, v{L16}", f"v_add_u32 v{YV+1}, 20480, v{YV}",
      f"s_mul_i32 s39, s{sRT4}, 163840", f"s_add_u32 s39, s39, {WS_Y}",
      f"s_add_u32 s{SY_}, s42, s39", f"s_addc_u32 s{SY_+1}, s43, 0", f"s_mov_b32 s{SY_+2}, 163840", f"s_mov_b32 s{SY_+3}, 0x20000",
      f"s_mul_i32 s39, s{sRT4}, 442368", f"s_add_u32 s39, s39, {WS_HH}",
      f"s_add_u32 s{SHH}, s42, s39", f"s_addc_u32 s{SHH+1}, s43, 0", f"s_mov_b32 s{SHH+2}, 442368", f"s_mov_b32 s{SHH+3}, 0x20000",
      f"v_add_u32 v{RA1}, {2*SLOT}, v{L16}", f"v_add_u32 v{RA2}, {4*SLOT}, v{L16}",
      "v_lshrrev_b32 v8, 1, v2", "v_lshlrev_b32 v8, 12, v8", "v_lshl_add_u32 v8, v4, 10, v8", "v_and_b32 v9, 1, v2", "v_lshl_add_u32 v8, v9, 8, v8", f"v_lshl_add_u32 v{SV3}, v3, 3, v8",
      f"v_lshrrev_b32 v8, 1, v{L16}", f"v_sub_u32 v10, v{YV}, v8", f"v_sub_u32 v11, v{YV+1}, v8",
      f"s_lshl_b32 s94, s{sRT4}, 13", f"s_add_u32 s94, s94, {WS_STATS}",
      "v_lshlrev_b32 v255, 7, v3", f"s_lshl_b32 s36, s{sRT4}, 2", f"s_add_u32 s36, s36, s{sWAVE}", "s_lshl_b32 s36, s36, 11", f"s_add_u32 s36, s36, {WS_G2}")
    p(f"s_mul_i32 s90, s{sCT4}, 448", f"s_add_u32 s90, s90, {WS_UW}", "s_add_u32 s91, s90, 6912", "s_add_u32 s92, s90, 13824", "s_add_u32 s93, s91, 13824",
      f"s_lshl_b32 s39, s{sPAR}, 6", f"v_add_u32 v12, s39, v{G16}", f"s_mul_i32 s39, s{sNB4}, 96", f"v_add_u32 v13, s39, v{G16}")
    uwl = []
    for m in range(2):
        for j in range(7):
            a_ = f"v12, {WS}, s%d offen offset:{64*j} sc1" if j < 6 else f"v13, {WS}, s%d offen sc1"
            uwl += [f"buffer_load_dwordx4 {vr(UW3+56*m+8*j,4)}, " + a_ % (90+m), f"buffer_load_dwordx4 {vr(UW3+56*m+8*j+4,4)}, " + a_ % (92+m)]
    early_poll(p, f"{name}_p2", (15, 255, "s36"), uwl + dma3(3) + dma3(4), EP[1], emit)
    p(ST("p2"))
    LEAD = LEAD3
    RAs = [L16, RA1, RA2]
    def yload(ks, tb):
        return f"buffer_load_dwordx4 {ar(BF3+8*(ks%BD)+4*tb,4)}, v{YV+tb}, {sr(SY_,4)}, s{sK4+ks//4} offen offset:{(ks%4)*1024} sc1"
    def yloads(ks):
        if ks % 5 == 2:
            return [f"buffer_load_dwordx2 {ar(BF3+8*(ks%BD)+4*tb+2*h,2)}, v{10+tb}, {sr(SY_,4)}, s{sK4+ks//4} offen offset:{(ks%4)*1024 + 512*h} sc1" for tb in range(2) for h in range(2)]
        return [yload(ks, tb) for tb in range(2)]
    def wreads(ks):
        sl = (ks // 2) % R
        base = (sl % 2) * SLOT + (ks % 2) * 14336
        return [f"ds_read_b128 {ar(WF3+56*(ks&1)+4*f,4)}, v{RAs[sl//2]} offset:{base + f*1024}" for f in range(14)]
    for ks in range(LEAD):
        for x in yloads(ks): p.vmem(x, f"Y{ks}")
    for tb in range(2):
        for h in range(2): p.vmem(f"buffer_load_dwordx2 {vr(STT+4*tb+2*h,2)}, v{SV3}, {WS}, s94 offen offset:{128*tb + 512*h} sc1", "S")
    p(f"s_waitcnt vmcnt({p.vmwait_n(['Y0'])}) lgkmcnt(0)")
    P4 = Skinny(False, groups([("a", 160, 240), ("v", 128, 232), ("a", 0, 96)]), 12, 16, 96, acct="v", at="a")
    P4.ST = ST
    pre = P4.preload()
    mf = []; tasks = []
    stat_tasks = []
    for ks in range(20):
        b = 28 * ks
        for tb in range(2):
            for m in range(2):
                for j in range(7):
                    d = vr(AC3 + 56*tb + 28*m + 4*j, 4)
                    mf.append(f"{MM} {d}, {ar(WF3+56*(ks&1)+28*m+4*j,4)}, {ar(BF3+8*(ks%BD)+4*tb,4)}, {d if ks else 0}")
        if ks < 19:
            for i, x in enumerate(wreads(ks + 1)):
                g = b + (i + i // 2 if DSP == 0 else (i * 12) // 7)
                tasks.append(Task(x, "ds", lo=g, hi=g))
            tags = f"Y{ks+1}" + (",S" if ks == 1 else "")
            if (ks + 1) & 1 and (ks + 2) // 2 < 10:
                if (ks + 2) // 2 >= 5 and not D3 & 4: tags += f",V{(ks+2)//2}"
                tasks.append(Task(f"WAITVM {tags} lgkm", "s", lo=b+26, hi=b+26)); tasks.append(Task("s_barrier" if not D3 & 1 else "s_nop 0", "s", lo=b+27, hi=b+27))
            else:
                tasks.append(Task(f"WAITVM {tags} lgkm", "s", lo=b+27, hi=b+27))
        for x in ST(f"k{ks}"): tasks.append(Task(x, "s", lo=b+22, hi=b+25))
        vm = []
        if ks + LEAD < 20: vm += [(f"Y{ks+LEAD}", x) for x in yloads(ks + LEAD)]
        st = (ks - 1) // 2 + 5
        if ks >= 1 and st < 10 and not D3 & 4:
            d = dma3(st); vm += d[:4] if ks % 2 == 1 else d[4:]
        if ks == 10:
            prev = None
            for x in P4.setup_w():
                t = Task(x, "s" if x.startswith("s_") else "a", lo=b, hi=b+27, after=[prev] if prev else [], gapdist=1); tasks.append(t); prev = t
        if ks >= 11:
            lim = 20 if ks < 15 else 46
            n_ = min(8 - len(vm), W4R - len(vm), lim - (70 - len(pre)))
            n_ = max(n_, 0)
            vm += pre[:n_]; pre = pre[n_:]
        if 5 <= ks <= 12 and not D3 & 2:
            for n_ in range((ks-5)*28//8, (ks-4)*28//8):
                tb, m, j = n_ // 14, (n_ // 7) % 2, n_ % 7
                a = STT + 4*tb
                for i in range(4):
                    r = AC3 + 4*n_ + i
                    t1 = Task(f"v_fmac_f32 v{r}, v{UW3+56*m+8*j+i}, v{a}", "a", lo=b+n_+5, hi=b+n_+23, after=stat_tasks[-1:])
                    t2 = Task(f"v_fmac_f32 v{r}, v{UW3+56*m+8*j+4+i}, v{a+3}", "a", lo=b+n_+5, hi=b+n_+24, after=[t1], gapdist=0)
                    tasks += [t1, t2]
        free = [b + 2 + 3*i for i in range(8)] if DSP == 0 else [b + x for x in (2, 4, 7, 9, 11, 14, 16, 19)]
        for fi, x in enumerate(vm):
            for k_, y in enumerate(reversed(x[1:-1])):
                tasks.append(Task(y, "s", lo=free[fi]-1-k_, hi=free[fi]-1-k_))
            tasks.append(Task(x[-1], "vm", lo=free[fi], hi=free[fi], tag=x[0]))
        if ks == 2:
            prev = None
            for tb in range(2):
                a = STT + 4*tb
                sq = [f"v_add_f32 v{a}, v{a}, v{a+2}", f"v_add_f32 v{a+1}, v{a+1}, v{a+3}"]
                for sw in ("32", "16"):
                    sq += [f"v_mov_b32 v{a+2}, v{a}", f"v_mov_b32 v{a+3}, v{a+1}", f"v_permlane{sw}_swap_b32 v{a}, v{a+2}", f"v_permlane{sw}_swap_b32 v{a+1}, v{a+3}",
                           f"v_add_f32 v{a}, v{a}, v{a+2}", f"v_add_f32 v{a+1}, v{a+1}, v{a+3}"]
                sq += [f"v_mul_f32 v{a}, {f32(-1/640)}, v{a}", f"v_mul_f32 v{a+1}, {f32(1/640)}, v{a+1}", f"v_fma_f32 v{a+1}, -v{a}, v{a}, v{a+1}",
                       f"v_max_f32 v{a+1}, 0, v{a+1}", f"v_add_f32 v{a+1}, {f32(1e-5)}, v{a+1}", f"v_rcp_f32 v{a+2}, v{a+1}", f"v_sqrt_f32 v{a+3}, v{a+1}"]
                for x in sq:
                    t = Task(x, "e" if ("rcp" in x or "sqrt" in x) else "a", lo=b, hi=b+80, after=[prev] if prev else [], gapdist=2 if "permlane" in x else 1); tasks.append(t); prev = t
                    stat_tasks.append(t)
    emit_sched(p, schedule(mf, tasks))
    p(ST("p3end"))
    body = ["v_mul_u32_u24 v14, 110592, v2", f"v_add_u32 v14, v14, v{L16}", "v_add_u32 v15, 55296, v14",
            f"v_lshrrev_b32 v7, 1, v{L16}", "v_sub_u32 v248, v14, v7", "v_sub_u32 v249, v15, v7",
            f"s_lshr_b32 s39, s{sCT4}, 1", "s_mul_i32 s39, s39, 7168", f"s_lshl_b32 s38, s{sPAR}, 12", "s_add_u32 s37, s39, s38",
            f"s_cmp_eq_u32 s{sCT4}, 15", f"s_cselect_b32 s36, {OOB}, s37", f"s_lshl_b32 s38, s{sPAR}, 9", "s_add_u32 s38, s38, s39"]
    for tb in range(2):
        for jp in range(4):
            a = STT + 4*tb
            js = (2*jp, 2*jp + 1) if jp < 3 else (6,)
            t = AC3 + 56*tb + 28 + 4*js[0]
            for j in js:
                g_ = AC3 + 56*tb + 4*j; u_ = g_ + 28
                body += [f"v_max_f32 v{g_+i}, 0, v{g_+i}" for i in range(4)]
                body += [f"v_pk_mul_f32 {vr(u_+i,2)}, {vr(u_+i,2)}, {vr(a+2,2)} op_sel_hi:[1,0]" for i in (0, 2)]
                body += [f"v_pk_mul_f32 {vr(g_+i,2)}, {vr(g_+i,2)}, {vr(u_+i,2)}" for i in (0, 2)]
            for h, j in enumerate(js):
                g_ = AC3 + 56*tb + 4*j
                body += [f"v_cvt_pk_bf16_f32 v{t+2*h}, v{g_}, v{g_+1}", f"v_cvt_pk_bf16_f32 v{t+2*h+1}, v{g_+2}, v{g_+3}"]
            if jp < 3: body.append(("H", f"buffer_store_dwordx4 {vr(t,4)}, v{14 + tb}, {sr(SHH,4)}, s{37 if jp == 0 else 36} offen offset:{1024*jp} sc1"))
            else: body.append(("H", f"buffer_store_dwordx2 {vr(t,2)}, v{248 + tb}, {sr(SHH,4)}, s38 offen offset:3072 sc1"))
    if NW4:
        seq, left = interleave(body, pre[:NW4], len(body) // NW4)
        emit(p, seq); pre = left + pre[NW4:]
    else: emit(p, body)
    p(ST("epi3"))
    emit(p, pre[:NB3]); pre = pre[NB3:]
    p(f"s_lshl_b32 s36, s{sRT4}, 2", f"s_add_u32 s36, s36, s{sWAVE}", "s_lshl_b32 s36, s36, 4", f"s_add_u32 s36, s36, s{sCT4}", "s_lshl_b32 s36, s36, 7", f"s_add_u32 s36, s36, {WS_G3}")
    p(P4.setup_a(236))
    srd(p, SY_, 4, 5, 2621440)
    wave_flag(p, "H", "s36")
    p("s_barrier")
    p(ST("pub3"))
    p("v_and_b32 v7, 3, v1", "v_bfe_u32 v8, v1, 2, 1", "v_lshl_add_u32 v7, v8, 4, v7", "v_lshlrev_b32 v255, 7, v7",
      f"s_lshl_b32 s36, s{sRT}, 3", f"s_add_u32 s36, s36, s{sWAVE}", "s_lshl_b32 s36, s36, 9", f"s_add_u32 s36, s36, {WS_G3}")
    p(f"s_cmp_eq_u32 s{sWAVE}, 3", f"s_cselect_b32 s{sK4+3}, {OOB}, s{sK4+3}")
    G0, XR, U0, R0 = 96, 116, 128, 148
    gl = [("G", f"buffer_load_dwordx4 {vr(G0+4*nb,4)}, v{G16}, {WS}, s{62 if nb < 4 else 100} offen offset:{64*(nb%4)} sc1") for nb in range(5)]
    p([f"v_accvgpr_read_b32 v{XR+j}, a{240+j}" for j in range(10)])
    early_poll(p, f"{name}_p3", (14, 255, "s36"), gl + pre, EP[2], emit)
    p(ST("p3"))
    P4.main(p, [], 99)
    p(ST("p4end"))
    p(P4.exchange_out(T))
    p("s_waitcnt lgkmcnt(0)", "s_barrier")
    p(P4.exchange_in(T, R0, U0, XR, G0))
    for nb in range(5): p(f"buffer_store_dwordx2 {vr(XR+2*nb,2)}, v{RM}, {sr(SY_,4)}, s{63 if nb < 4 else 101} offen offset:{32*(nb%4)}")
    if stamp and DBGOUT:
        p("s_waitcnt vmcnt(0)", ST("end"), "s_load_dwordx2 s[92:93], s[0:1], 96", "s_mov_b32 s94, 256", "s_mov_b32 s95, 0x20000", "s_waitcnt lgkmcnt(0)",
          f"s_cmp_lg_u32 s2, {DBGOUT}", f"s_cbranch_scc1 {name}_end", f"s_cmp_lg_u32 s{sWAVE}, 0", f"s_cbranch_scc1 {name}_end", "v_mov_b32 v1, 0")
        for i in range(1, len(stamp)):
            p(f"s_sub_u32 s97, s{64+2*i}, s64", "v_mov_b32 v2, s97", f"buffer_store_dword v2, v1, s[92:95], 0 offen offset:{4*i}")
    elif stamp: p("s_waitcnt vmcnt(0)", ST("end"), stamp_out2(42, len(stamp)))
    p.label(f"{name}_end")
    p("s_endpgm")
    return c.lines
```
